```python
import torch

def _softmax(x, axis=-1):
    return torch.softmax(x, dim=axis)
def _gelu(x):
    return torch.nn.functional.gelu(x, approximate="tanh")
def _silu(x):
    return torch.nn.functional.silu(x)
def _sigmoid(x):
    return torch.sigmoid(x)
def _layernorm(x, axis=-1, eps=1e-5):
    m = x.mean(dim=axis, keepdim=True)
    v = x.var(dim=axis, keepdim=True, unbiased=False)
    return (x - m) / torch.sqrt(v + eps)
def _scatter_add(tgt, idx, src, axis=0):
    return tgt.clone().index_add_(axis, idx, src)
def _segment_sum(src, seg, n):
    out = torch.zeros((n,) + src.shape[1:], dtype=src.dtype)
    return out.index_add_(0, seg, src)
def _pad(x, pw):
    flat = tuple(v for pair in reversed(pw) for v in pair)
    return torch.nn.functional.pad(x, flat)

kernel_name = 'sequential_preLN__grouped_kv_mqa__glu_gated_glu__prompt'

def setup_inputs():

    _w = (lambda a: (lambda t: t.to(torch.bfloat16) if t.is_floating_point() else t)(torch.as_tensor(a)))
    def _A_setup():
        B, S, D, H = 1, 2048, 512, 32
        Dh = D // H
        return {
            "x": _w((lambda *s: torch.randn(*s, dtype=torch.bfloat16) * 0.05)(B, S, D)),
            "wq": _w((lambda *s: torch.randn(*s, dtype=torch.bfloat16) * 0.05)(D, H * Dh)),
            "wk": _w((lambda *s: torch.randn(*s, dtype=torch.bfloat16) * 0.05)(D, Dh)),
            "wv": _w((lambda *s: torch.randn(*s, dtype=torch.bfloat16) * 0.05)(D, Dh)),
            "wo": _w((lambda *s: torch.randn(*s, dtype=torch.bfloat16) * 0.05)(H * Dh, D)),
        }
    _A_in = _A_setup()

    def _B_setup():
        B, S, D, F = 1, 2048, 512, 1792
        return {
            "x": _w((lambda *s: torch.randn(*s, dtype=torch.bfloat16) * 0.05)(B, S, D)),
            "w_gate": _w((lambda *s: torch.randn(*s, dtype=torch.bfloat16) * 0.05)(D, F)),
            "w_up": _w((lambda *s: torch.randn(*s, dtype=torch.bfloat16) * 0.05)(D, F)),
            "w_down": _w((lambda *s: torch.randn(*s, dtype=torch.bfloat16) * 0.05)(F, D)),
        }
    _B_in = _B_setup()

    return {
        "A_x": _A_in["x"],
        "A_wq": _A_in["wq"],
        "A_wk": _A_in["wk"],
        "A_wv": _A_in["wv"],
        "A_wo": _A_in["wo"],
        "B_x": _B_in["x"],
        "B_w_gate": _B_in["w_gate"],
        "B_w_up": _B_in["w_up"],
        "B_w_down": _B_in["w_down"],
    }

def reference(A_x, A_wq, A_wk, A_wv, A_wo, B_x, B_w_gate, B_w_up, B_w_down):
    def _A_ref(x, wq, wk, wv, wo):
        B, S, D = x.shape
        H = 32
        Dh = D // H
        q = (lambda x, *d: x.permute(*d))((x @ wq).reshape(B, S, H, Dh), 0, 2, 1, 3)
        k = x @ wk
        v = x @ wv
        scores = torch.einsum("bhqd,bkd->bhqk", q, k) * (Dh ** -0.5)
        p = _softmax(scores, axis=-1)
        o = torch.einsum("bhqk,bkd->bhqd", p, v)
        return (lambda x, *d: x.permute(*d))(o, 0, 2, 1, 3).reshape(B, S, H * Dh) @ wo

    def _B_ref(x, w_gate, w_up, w_down):
        g = torch.einsum("bsd,df->bsf", x, w_gate)
        u = torch.einsum("bsd,df->bsf", x, w_up)
        h = _sigmoid(g) * u
        return torch.einsum("bsf,fd->bsd", h, w_down)

    x = A_x
    h = x + _A_ref(_layernorm(x, axis=-1), A_wq, A_wk, A_wv, A_wo)
    h2 = h + _B_ref(_layernorm(h, axis=-1), B_w_gate, B_w_up, B_w_down)
    return h2
```

```python
import re

class Asm:
    def __init__(self):
        self.lines = []
    def __call__(self, s):
        for l in s.split("\n"):
            l = l.strip()
            if l:
                self.lines.append(l if l.endswith(":") or l.startswith(".") else "    " + l)
    def label(self, name):
        self.lines.append(name + ":")
    def comment(self, s):
        self.lines.append("    ; " + s)
    def text(self):
        return "\n".join(self.lines) + "\n"

def vr(base, n=1):
    return f"v{base}" if n == 1 else f"v[{base}:{base+n-1}]"
def sr(base, n=1):
    return f"s{base}" if n == 1 else f"s[{base}:{base+n-1}]"

_REG = re.compile(r"^(-|\|)?(abs\()?([vsa])(\d+|\[(\d+):(\d+)\])\)?\|?$")
TRANS = ("v_exp_", "v_log_", "v_rcp_", "v_rsq_", "v_sqrt_", "v_sin_", "v_cos_")

def _regs(tok):
    tok = tok.strip()
    if tok == "vcc": return {("s", "vcc")}
    if tok == "exec": return {("s", "exec")}
    if tok == "m0": return {("s", "m0")}
    m = _REG.match(tok)
    if not m: return set()
    k = m.group(3)
    if m.group(5) is not None:
        return {(k, i) for i in range(int(m.group(5)), int(m.group(6)) + 1)}
    return {(k, int(m.group(4)))}

class Ins:
    def __init__(self, text, idx):
        self.text, self.idx = text, idx
        t = text.split(";")[0].strip()
        parts = t.split(None, 1)
        self.op = parts[0]
        rest = parts[1] if len(parts) > 1 else ""
        ops = [o.strip() for o in re.split(r",(?![^\[]*\])", rest)] if rest else []
        self.mods = ""
        if ops:
            last = ops[-1].split(None, 1)
            ops[-1] = last[0]
            self.mods = last[1] if len(last) > 1 else ""
        self.ops = ops
        op = self.op
        self.mfma = op.startswith("v_mfma") or op.startswith("v_smfmac")
        self.valu = op.startswith("v_") and not self.mfma
        self.trans = op.startswith(TRANS)
        self.dot = op.startswith("v_dot")
        self.ds = op.startswith("ds_")
        self.vmem = op.startswith(("buffer_", "global_", "flat_"))
        self.salu = op.startswith("s_")
        self.dpp = "_dpp" in op or "quad_perm" in self.mods or "row_" in self.mods
        self.perm = op.startswith("v_permlane")
        self.lds_dma = self.vmem and (" lds" in " " + self.mods or "_lds_" in op)
        self.passes = 0
        if self.mfma:
            self.passes = 8 if "32x32" in op else 4
        R = [_regs(o) for o in ops]
        self.w, self.r = set(), set()
        self.A = self.B = self.C = set()
        self.store_data = set()
        if self.mfma:
            self.w = R[0]; self.A, self.B, self.C = R[1], R[2], R[3]
            if op.startswith("v_smfmac"):
                self.B = R[2] | R[3]; self.C = R[0]
            self.r = self.A | self.B | self.C
        elif self.valu:
            if op.startswith("v_nop"):
                pass
            elif op.startswith("v_cmp"):
                self.w = R[0]; self.r = set().union(*R[1:])
            elif self.perm and "swap" in op:
                self.w = R[0] | R[1]; self.r = R[0] | R[1]
            elif "_co_" in op:
                self.w = R[0] | R[1]; self.r = set().union(*R[2:])
            else:
                self.w = R[0]; self.r = set().union(*R[1:]) if len(R) > 1 else set()
                if op.startswith(("v_fmac", "v_dot2c", "v_writelane")) or self.dpp: self.r |= R[0]
        elif self.ds:
            if op.startswith(("ds_read", "ds_bpermute", "ds_permute", "ds_swizzle")):
                self.w = R[0]; self.r = set().union(*R[1:])
            else:
                self.r = set().union(*R)
        elif self.vmem:
            if op in ("buffer_inv", "buffer_wbl2"):
                pass
            elif self.lds_dma:
                self.r = set().union(*R) | {("s", "m0")}
            elif "load" in op:
                self.w = R[0]; self.r = set().union(*R[1:])
            else:
                self.r = set().union(*R)
                if "x4" in op or "x3" in op:
                    self.store_data = R[0] if op.startswith("buffer_") else R[1]
        elif self.salu:
            if op.startswith(("s_cmp", "s_bitcmp", "s_waitcnt", "s_nop", "s_barrier", "s_branch", "s_cbranch", "s_setprio", "s_sleep", "s_endpgm")):
                self.r = set().union(*R) if R else set()
            else:
                self.w = R[0]; self.r = set().union(*R[1:]) if len(R) > 1 else set()
                if "saveexec" in op: self.w |= {("s", "exec")}
        self.states = 1
        if op == "s_nop": self.states = int(ops[0], 0) + 1

def _need(p, c):
    n = 0
    pv = {x for x in p.w if x[0] in "va"}
    ps = {x for x in p.w if x[0] == "s"}
    if p.valu:
        if c.mfma and pv & c.r: n = max(n, 3 if p.dot else 2)
        if p.trans and c.valu and not c.trans and pv & c.r: n = max(n, 1)
        if (c.perm or c.dpp) and pv & c.r: n = max(n, 2)
        if c.op.startswith(("v_readlane", "v_readfirstlane")) and pv & c.r: n = max(n, 1)
        if c.vmem and ps & c.r: n = max(n, 5)
        if c.valu and ps & c.r: n = max(n, 4 if c.op.startswith(("v_readlane", "v_writelane")) else 2)
        if p.dot and (c.valu or c.vmem or c.ds) and pv & (c.r | c.w):
            if not (c.op == p.op and pv == c.w and not (pv & set().union(*[_regs(o) for o in c.ops[1:]]))): n = max(n, 3)
        if ("sdwa" in p.op or "op_sel" in p.mods) and c.valu and pv & (c.r | c.w): n = max(n, 1)
    if p.mfma:
        big = p.passes == 8
        if c.mfma:
            if pv & (c.A | c.B): n = max(n, 12 if big else 8)
            if pv & c.C and not (pv == c.C and c.passes == p.passes): n = max(n, 10 if big else 6)
            if pv & c.w and not (pv & c.C) : n = max(n, 0)
        elif (c.valu or c.vmem or c.ds) and pv & (c.r | c.w): n = max(n, 12 if big else 8)
        if c.valu and p.C & c.w: n = max(n, 7 if big else 3)
    if p.salu and ("s", "m0") in p.w and c.lds_dma: n = max(n, 1)
    if p.store_data and p.store_data & c.w: n = max(n, 2 if c.valu else 1)
    return n

def check_hazards(text, window=24):
    ins, labels = [], {}
    for ln in text.split("\n"):
        s = ln.split(";")[0].strip()
        if not s or s.startswith("."): continue
        if s.endswith(":"):
            labels[s[:-1]] = len(ins); continue
        ins.append(Ins(s, len(ins)))
    preds = [[] for _ in range(len(ins) + 1)]
    for i, x in enumerate(ins):
        if x.op not in ("s_branch", "s_endpgm", "s_setpc_b64"): preds[i + 1].append(i)
        if x.op == "s_branch" or x.op.startswith("s_cbranch"):
            preds[labels[x.ops[0]]].append(i)
    errs = []
    for c in ins:
        stack = [(p, 0) for p in preds[c.idx]]
        seen = {}
        while stack:
            i, d = stack.pop()
            if i in seen and seen[i] <= d: continue
            seen[i] = d
            p = ins[i]
            need = _need(p, c)
            if need > d:
                errs.append(f"hazard: [{p.idx}] {p.text}  ->  [{c.idx}] {c.text}: have {d}, need {need}")
            d2 = d + p.states
            if d2 < 13:
                stack += [(q, d2) for q in preds[i]]
    return errs
```

```python
from asmlib import *
from layout import *

LDS_X, LDS_W, LDS_KV, LDS_SC = 0, 65536, 131072, 147456
SC_MEAN, SC_RSTD, SC_CS = LDS_SC, LDS_SC + 256, LDS_SC + 512
LDS_RO = LDS_SC + 1024
KA_LDS = LDS_RO + 4096

def srd(a, d, base, size):
    a(f"s_mov_b32 s{d}, s{base}\ns_mov_b32 s{d+1}, s{base+1}\ns_mov_b32 s{d+2}, {size:#x}\ns_mov_b32 s{d+3}, 0x00020000")

def code_touch(a, tag, start, end, vidx, v0, s0):
    a(f"s_getpc_b64 s[{s0}:{s0+1}]")
    a.label(f"ct_{tag}")
    if start is None: start = f"ct_{tag}"
    else: a(f"s_add_u32 s{s0}, s{s0}, {start}-ct_{tag}\ns_addc_u32 s{s0+1}, s{s0+1}, 0")
    a(f"""
    v_lshlrev_b32 v{v0}, 7, v{vidx}
    v_mov_b32 v{v0+1}, s{s0+1}
    v_cmp_gt_u32 vcc, {end}-{start}, v{v0}
    s_and_saveexec_b64 s[{s0+2}:{s0+3}], vcc
    s_cbranch_execz ct_skip_{tag}
    v_add_co_u32 v{v0}, vcc, s{s0}, v{v0}
    s_nop 1
    v_addc_co_u32 v{v0+1}, vcc, 0, v{v0+1}, vcc
    global_load_dword v{v0+2}, v[{v0}:{v0+1}], off
    """)
    a.label(f"ct_skip_{tag}")
    a(f"s_mov_b64 exec, -1")

def gen_ka(a, name, opt):
    X, WQ, WKV, WS = 16, 20, 24, 28
    sRB, sCB, sROT, sW, sT, sT2, sM = 32, 33, 34, 35, 36, 37, 38
    vL, vXA, vXB, vWA, vKA, vT, vT2 = 1, 2, 3, 4, 5, 6, 7
    a.label(name)
    a(f"""
    s_cmp_ge_u32 s2, 256
    s_cbranch_scc1 ka_exit
    s_load_dwordx8 s[4:11], s[0:1], 0
    s_load_dwordx2 s[12:13], s[0:1], 88
    s_load_dwordx2 s[14:15], s[0:1], 32
    s_load_dwordx4 s[76:79], s[0:1], 48
    s_load_dwordx2 s[80:81], s[0:1], 64
    """)
    def stamp(i):
        if opt.get("stamp"): a(f"s_memrealtime s[{60+2*i}:{61+2*i}]")
    stamp(0)
    if not opt.get("nopf"): code_touch(a, "a", None, "ka_exit", 0, 24, 48)
    a(f"""
    v_lshrrev_b32 v{vT}, 6, v0
    v_and_b32 v{vL}, 63, v0
    s_lshr_b32 s{sT}, s2, 3
    v_readfirstlane_b32 s{sW}, v{vT}
    s_and_b32 s{sCB}, s{sT}, 7
    s_lshr_b32 s{sT}, s{sT}, 3
    s_add_u32 s{sROT}, s{sT}, s{sCB}
    s_and_b32 s{sROT}, s{sROT}, 3
    s_and_b32 s{sRB}, s2, 7
    s_lshl_b32 s{sRB}, s{sRB}, 2
    s_add_u32 s{sRB}, s{sRB}, s{sT}
    """)
    a(f"""
    v_lshrrev_b32 v{vT2}, 4, v{vL}
    v_lshl_add_u32 v{vT}, v{vT}, 3, v{vT2}
    v_xor_b32 v{vXA}, v{vL}, v{vT}
    v_and_b32 v{vXA}, 15, v{vXA}
    v_lshlrev_b32 v{vXA}, 4, v{vXA}
    v_lshl_add_u32 v{vXA}, v{vT}, 10, v{vXA}
    v_xor_b32 v{vXB}, 64, v{vXA}
    v_add_u32 v{vXB}, 0x1000, v{vXB}
    v_and_b32 v{vT2}, 1, v{vT2}
    v_lshlrev_b32 v{vT2}, 2, v{vT2}
    v_xor_b32 v{vT2}, v{vT2}, v{vL}
    v_and_b32 v{vT2}, 7, v{vT2}
    v_lshlrev_b32 v{vT2}, 4, v{vT2}
    v_lshrrev_b32 v{vWA}, 3, v{vL}
    v_lshl_add_u32 v{vWA}, v{vWA}, 10, v{vT2}
    v_lshlrev_b32 v{vKA}, 4, v{vL}
    s_waitcnt lgkmcnt(0)
    """)
    srd(a, X, 4, 2048*1024)
    srd(a, WQ, 6, 512*1024)
    a(f"""
    s_bitcmp1_b32 s{sCB}, 0
    s_cselect_b32 s{WKV}, s10, s8
    s_cselect_b32 s{WKV+1}, s11, s9
    s_mov_b32 s{WKV+2}, 0x4000
    s_mov_b32 s{WKV+3}, 0x00020000
    """)
    sXO, sWO, sKC, sMW = 40, 41, 42, 43
    a(f"""
    s_lshl_b32 s{sMW}, s{sW}, 11
    s_lshl_b32 s{sXO}, s{sRB}, 16
    s_lshl_b32 s{sWO}, s{sW}, 14
    s_lshl_b32 s{sT}, s{sCB}, 7
    s_add_u32 s{sWO}, s{sWO}, s{sT}
    """)
    def issue(i):
        a(f"""
        s_add_u32 s{sKC}, s{sROT}, {i}
        s_and_b32 s{sKC}, s{sKC}, 3
        s_lshl_b32 s46, s{sKC}, 8
        s_add_u32 s46, s46, s{sXO}
        s_add_u32 m0, s{sMW}, {LDS_X + i*16384}
        s_lshl_b32 s47, s{sKC}, 17
        buffer_load_dwordx4 v{vXA}, s[{X}:{X+3}], s46 offen lds
        s_add_u32 m0, s{sMW}, {LDS_X + i*16384 + 1024}
        s_add_u32 s47, s47, s{sWO}
        buffer_load_dwordx4 v{vXB}, s[{X}:{X+3}], s46 offen lds
        s_add_u32 m0, s{sMW}, {LDS_W + i*16384}
        s_add_u32 s46, s47, 0x2000
        buffer_load_dwordx4 v{vWA}, s[{WQ}:{WQ+3}], s47 offen lds
        s_add_u32 m0, s{sMW}, {LDS_W + i*16384 + 1024}
        s_nop 0
        buffer_load_dwordx4 v{vWA}, s[{WQ}:{WQ+3}], s46 offen lds
        """)
    issue(0)
    a(f"""
    s_lshl_b32 s{sT}, s{sROT}, 12
    s_add_u32 s{sT}, s{sT}, s{sMW}
    s_add_u32 m0, s{sMW}, {LDS_KV}
    s_and_b32 s{sT}, s{sT}, 0x3fff
    buffer_load_dwordx4 v{vKA}, s[{WKV}:{WKV+3}], s{sT} offen lds
    buffer_load_dwordx4 v{vKA}, s[{WKV}:{WKV+3}], s{sT} offen offset:1024 lds
    """)
    srd(a, WS, 12, WS_SIZE)
    stamp(1)
    if opt.get("stamp"): a("s_waitcnt lgkmcnt(0)")
    def chunk_wait(i):
        if opt.get("pre"): stamp(2 + i)
        if i == 0:
            a("s_barrier")
            issue(1)
        a(f"s_waitcnt vmcnt({4 if i < 3 else 0})\ns_barrier")
        if not opt.get("pre"): stamp(2 + i)
        if opt.get("stamp"): a("s_waitcnt lgkmcnt(0)")
    def chunk_next(i):
        if i < 2: issue(i + 2)
    vTok, vKH = 8, 9
    a(f"""
    v_and_b32 v{vTok}, 31, v{vL}
    v_lshrrev_b32 v{vKH}, 5, v{vL}
    s_cmp_ge_u32 s{sW}, 4
    s_cbranch_scc1 ka_help
    """)
    vXF = 10
    a(f"""
    s_and_b32 s{sT}, s{sW}, 1
    s_lshl_b32 s{sT}, s{sT}, 13
    v_xor_b32 v{vT}, v{vKH}, v{vTok}
    v_and_b32 v{vT}, 15, v{vT}
    v_lshlrev_b32 v{vT}, 4, v{vT}
    v_lshl_add_u32 v{vT}, v{vTok}, 8, v{vT}
    v_add_u32 v{vXF}, s{sT}, v{vT}
    """)
    for s in range(1, 8):
        a(f"v_xor_b32 v{vXF+s}, {s << 5}, v{vXF}")

    def w_frag_addr(dst, ft_sgpr):
        a(f"""
        v_bfe_u32 v{vT}, v{vL}, 2, 2
        v_lshl_add_u32 v{vT}, v{vKH}, 3, v{vT}
        v_lshlrev_b32 v{dst}, 7, v{vT}
        v_bfe_u32 v{vT}, v{vL}, 3, 1
        v_lshlrev_b32 v{vT}, 6, v{vT}
        """)
        if ft_sgpr is not None:
            a(f"v_xor_b32 v{vT}, s{ft_sgpr}, v{vT}")
        a(f"""
        v_add_u32 v{dst}, v{dst}, v{vT}
        v_bfe_u32 v{vT}, v{vL}, 4, 1
        v_lshl_add_u32 v{dst}, v{vT}, 5, v{dst}
        v_and_b32 v{vT}, 1, v{vL}
        v_lshl_add_u32 v{dst}, v{vT}, 4, v{dst}
        v_bfe_u32 v{vT}, v{vL}, 1, 1
        v_lshl_add_u32 v{dst}, v{vT}, 3, v{dst}
        v_add_u32 v{dst}, {LDS_W}, v{dst}
        """)

    vWF, vAcc, vFr = 18, 32, 64
    a(f"s_lshr_b32 s{sT2}, s{sW}, 1\ns_lshl_b32 s{sT2}, s{sT2}, 6")
    w_frag_addr(vWF, sT2)
    vQO, vCSA, vSTA = 19, 20, 21
    a(f"""
    s_and_b32 s{sT}, s{sW}, 1
    s_lshl_b32 s{sT}, s{sT}, 5
    v_add_u32 v{vT}, s{sT}, v{vTok}
    v_lshlrev_b32 v{vSTA}, 2, v{vT}
    v_add_u32 v{vSTA}, {SC_MEAN}, v{vSTA}
    v_lshrrev_b32 v{vT2}, 3, v{vT}
    v_lshlrev_b32 v{vQO}, 13, v{vT2}
    v_and_b32 v{vT}, 7, v{vT}
    v_lshl_add_u32 v{vQO}, v{vT}, 4, v{vQO}
    v_lshl_add_u32 v{vQO}, v{vKH}, 9, v{vQO}
    s_lshl_b32 s{sT}, s{sT2}, 1
    s_add_u32 s{sT}, s{sT}, {SC_CS}
    v_lshl_add_u32 v{vCSA}, v{vKH}, 4, s{sT}
    s_lshl_b32 s{sT2}, s{sT2}, 2
    s_lshl_b32 s{sT}, s{sCB}, 10
    s_add_u32 s{sT2}, s{sT2}, s{sT}
    s_add_u32 s{sM}, s{sT2}, s{sXO}
    """)
    TS, sTO = 52, 56
    a(f"""
    s_cmp_eq_u32 s{sW}, 1
    s_cselect_b32 s{TS}, s78, s76
    s_cselect_b32 s{TS+1}, s79, s77
    s_cmp_ge_u32 s{sW}, 2
    s_cselect_b32 s{TS}, s80, s{TS}
    s_cselect_b32 s{TS+1}, s81, s{TS+1}
    s_mov_b32 s{TS+2}, {512*3584}
    s_mov_b32 s{TS+3}, 0x00020000
    s_cbranch_scc1 ka_td
    v_mul_u32_u24 v27, 3584, v{vL}
    s_and_b32 s{sTO}, s2, 7
    s_mul_i32 s{sTO}, s{sTO}, {64*3584}
    s_lshr_b32 s57, s2, 3
    s_lshl_b32 s57, s57, 7
    s_add_u32 s{sTO}, s{sTO}, s57
    s_branch ka_te
    """)
    a.label("ka_td")
    a(f"""
    v_lshrrev_b32 v27, 2, v{vL}
    v_lshlrev_b32 v27, 10, v27
    v_and_b32 v{vT}, 3, v{vL}
    v_lshl_add_u32 v27, v{vT}, 7, v27
    s_lshr_b32 s{sTO}, s2, 1
    s_lshl_b32 s{sTO}, s{sTO}, 14
    s_and_b32 s57, s2, 1
    s_lshl_b32 s57, s57, 9
    s_add_u32 s{sTO}, s{sTO}, s57
    """)
    a.label("ka_te")
    a(f"""
    s_cmp_eq_u32 s{sW}, 3
    s_cselect_b32 s{sTO}, 0x40000000, s{sTO}
    s_cmp_ge_u32 s2, 224
    s_cselect_b32 s{sTO}, 0x40000000, s{sTO}
    """)
    def q_reads(i, s):
        f = vFr + 8*s
        a(f"ds_read_b128 {vr(f,4)}, v{vXF+s} offset:{i*16384}")
        a(f"ds_read_b64_tr_b16 {vr(f+4,2)}, v{vWF} offset:{(8*i+s)*2048}")
        a(f"ds_read_b64_tr_b16 {vr(f+6,2)}, v{vWF} offset:{(8*i+s)*2048+512}")
    for i in range(4):
        chunk_wait(i)
        for s in range(4): q_reads(i, s)
        chunk_next(i)
        if i == 3 and not opt.get("notouch"):
            a.comment("waves 0-2 pull the sources of this workgroup's later re-layout units into L2")
            a(f"buffer_load_dword v26, v27, s[{TS}:{TS+3}], s{sTO} offen")
        for s in range(8):
            a(f"s_waitcnt lgkmcnt({3*(min(s+3,7)-s)})")
            f = vFr + 8*s
            c = "0" if (i == 0 and s == 0) else vr(vAcc, 16)
            a(f"v_mfma_f32_32x32x16_bf16 {vr(vAcc,16)}, {vr(f+4,4)}, {vr(f,4)}, {c}")
            if s + 4 < 8: q_reads(i, s + 4)
    vCS, vMean, vRs = 48, 22, 23
    a("s_barrier")
    a(f"ds_read_b32 v{vMean}, v{vSTA}\nds_read_b32 v{vRs}, v{vSTA} offset:256")
    for q in range(4):
        a(f"ds_read_b128 {vr(vCS+4*q,4)}, v{vCSA} offset:{32*q}")
    a(f"""
    s_waitcnt lgkmcnt(4)
    v_mul_f32 v{vRs}, {f32(0.25*LOG2E)}, v{vRs}
    v_mul_f32 v{vMean}, v{vMean}, v{vRs}
    s_waitcnt lgkmcnt(0)
    """)
    for r in range(16): a(f"v_mul_f32 v{vCS+r}, v{vCS+r}, v{vMean}")
    for r in range(16): a(f"v_fma_f32 v{vAcc+r}, v{vAcc+r}, v{vRs}, -v{vCS+r}")
    for r in range(8): a(f"v_cvt_pk_bf16_f32 v{vFr+r}, v{vAcc+2*r}, v{vAcc+2*r+1}")
    a(f"""
    buffer_store_dwordx4 {vr(vFr,4)}, v{vQO}, s[{WS}:{WS+3}], s{sM} offen sc1
    buffer_store_dwordx4 {vr(vFr+4,4)}, v{vQO}, s[{WS}:{WS+3}], s{sM} offen offset:128 sc1
    s_branch ka_done
    """)

    a.label("ka_help")
    vT16, vG, vWK, vW16, vOn4 = 8, 9, 14, 17, 20
    vD, vD2, vSum, vGr, vCs = 32, 36, 40, 44, 48
    sTQ, sJ = 44, 45
    a(f"""
    s_lshr_b32 s{sTQ}, s{sCB}, 1
    s_and_b32 s{sJ}, s{sW}, 3
    v_and_b32 v{vT16}, 15, v{vL}
    v_lshrrev_b32 v{vG}, 4, v{vL}
    s_lshl_b32 s{sT}, s{sJ}, 12
    v_xor_b32 v{vT}, v{vG}, v{vT16}
    v_lshlrev_b32 v{vT}, 4, v{vT}
    v_lshl_add_u32 v{vT}, v{vT16}, 8, v{vT}
    v_add_u32 v10, s{sT}, v{vT}
    v_xor_b32 v11, 64, v10
    v_xor_b32 v12, 0x80, v10
    v_xor_b32 v13, 0xc0, v10
    v_bfe_u32 v{vT}, v{vL}, 2, 2
    v_lshl_add_u32 v{vT}, v{vG}, 3, v{vT}
    v_lshlrev_b32 v{vWK}, 5, v{vT}
    v_lshlrev_b32 v{vW16}, 7, v{vT}
    v_and_b32 v{vT}, 3, v{vL}
    v_lshl_add_u32 v{vWK}, v{vT}, 3, v{vWK}
    v_add_u32 v{vWK}, {LDS_KV}, v{vWK}
    s_lshl_b32 s{sT}, s{sJ}, 5
    v_bfe_u32 v{vT}, v{vL}, 3, 1
    v_lshlrev_b32 v{vT}, 6, v{vT}
    v_xor_b32 v{vT}, s{sT}, v{vT}
    v_add_u32 v{vW16}, v{vW16}, v{vT}
    v_and_b32 v{vT}, 1, v{vL}
    v_lshl_add_u32 v{vW16}, v{vT}, 4, v{vW16}
    v_bfe_u32 v{vT}, v{vL}, 1, 1
    v_lshl_add_u32 v{vW16}, v{vT}, 3, v{vW16}
    v_add_u32 v{vW16}, {LDS_W}, v{vW16}
    s_lshl_b32 s{sT}, s{sRB}, 1
    s_lshr_b32 s{sT2}, s{sTQ}, 1
    s_add_u32 s{sT}, s{sT}, s{sT2}
    s_mul_i32 s{sM}, s{sT}, {KVT}
    s_add_u32 s{sM}, s{sM}, {WS_KV}
    s_lshl_b32 s{sT}, s{sJ}, 6
    s_add_u32 s{sT}, s{sT}, {SC_MEAN}
    v_lshl_add_u32 v18, v{vT16}, 2, s{sT}
    s_and_b32 s{sT2}, s{sTQ}, 1
    """)
    for r in range(4): a(f"v_mov_b32 v{vOn4+r}, {ONES:#x}")
    if not opt.get("nopf") and not opt.get("only_a"):
        a(f"s_cmp_lg_u32 s{sJ}, 0\ns_cbranch_scc1 ka_nopf\ns_lshl_b32 s48, s{sCB}, 6\nv_add_u32 v27, s48, v{vL}")
        code_touch(a, "b", NAME + "_kernel", "kb_exit", 27, 24, 48)
        a.label("ka_nopf")
    RO, sRL, vRA, vRT = 52, 56, 28, 29
    srd(a, RO, 14, 512*1024)
    a(f"""
    s_xor_b32 s48, s{sTQ}, 2
    s_cmp_eq_u32 s{sJ}, s48
    s_cselect_b32 s{sRL}, s2, 0x1000
    s_cmp_ge_u32 s{sRL}, 128
    s_cbranch_scc1 ka_norl
    v_lshrrev_b32 v{vT}, 3, v{vL}
    v_lshlrev_b32 v{vRA}, 10, v{vT}
    v_bfe_u32 v{vT}, v{vL}, 1, 2
    v_lshl_add_u32 v{vRA}, v{vT}, 6, v{vRA}
    v_and_b32 v{vT}, 1, v{vL}
    v_lshl_add_u32 v{vRA}, v{vT}, 4, v{vRA}
    s_bfe_u32 s48, s{sRL}, 0x40001
    s_lshl_b32 s48, s48, 15
    s_lshr_b32 s49, s{sRL}, 5
    s_lshl_b32 s49, s49, 8
    s_add_u32 s48, s48, s49
    s_and_b32 s49, s{sRL}, 1
    s_lshl_b32 s49, s49, 5
    s_add_u32 s48, s48, s49
    """)
    for i in range(4):
        a(f"s_mov_b32 m0, {LDS_RO + i*1024}\ns_add_u32 s49, s48, {i*8192}\nbuffer_load_dwordx4 v{vRA}, s[{RO}:{RO+3}], s49 offen lds")
    a.label("ka_norl")
    a(f"""
    s_cmp_lg_u32 s{sJ}, s{sTQ}
    s_cbranch_scc1 ka_h0
    s_bitcmp1_b32 s{sCB}, 0
    s_cbranch_scc1 ka_h2
    """)
    for mode in (1, 2, 0):
        isv = mode == 2
        a.label(f"ka_h{mode}")
        if mode == 2:
            a(f"""
            v_lshl_add_u32 v15, v{vG}, 4, s{sT}
            s_mul_i32 s{sT2}, s{sT2}, {VH}
            s_add_u32 s{sM}, s{sM}, s{sT2}
            v_lshrrev_b32 v{vT}, 1, v{vG}
            v_lshlrev_b32 v16, 8, v{vT}
            v_lshl_add_u32 v16, v{vT16}, 4, v16
            v_and_b32 v{vT}, 1, v{vG}
            v_lshl_add_u32 v16, v{vT}, 3, v16
            """)
        elif mode == 1:
            a(f"""
            s_lshl_b32 s{sT2}, s{sT2}, 8
            s_add_u32 s{sM}, s{sM}, s{sT2}
            v_lshrrev_b32 v{vT}, 1, v{vG}
            v_lshlrev_b32 v16, 9, v{vT}
            v_lshl_add_u32 v16, v{vT16}, 4, v16
            v_and_b32 v{vT}, 1, v{vG}
            v_lshl_add_u32 v16, v{vT}, 3, v16
            """)
        nr = 5 if mode else 3
        def h_reads(i, s):
            f = vFr + 12*s
            a(f"ds_read_b128 {vr(f,4)}, v{10+s} offset:{i*16384}")
            a(f"ds_read_b64_tr_b16 {vr(f+4,2)}, v{vW16} offset:{(4*i+s)*4096}")
            a(f"ds_read_b64_tr_b16 {vr(f+6,2)}, v{vW16} offset:{(4*i+s)*4096+512}")
            if mode:
                a(f"ds_read_b64_tr_b16 {vr(f+8,2)}, v{vWK} offset:{(4*i+s)*1024}")
                a(f"ds_read_b64_tr_b16 {vr(f+10,2)}, v{vWK} offset:{(4*i+s)*1024+128}")
        def m16(d, x, y, first):
            a(f"v_mfma_f32_16x16x32_bf16 {vr(d,4)}, {x}, {y}, {'0' if first else vr(d,4)}")
        for i in range(4):
            chunk_wait(i)
            for s in range(3): h_reads(i, s)
            chunk_next(i)
            for s in range(4):
                f = vFr + 12*s
                first = i == 0 and s == 0
                a(f"s_waitcnt lgkmcnt({nr*(min(s+2,3)-s)})")
                xa, wa, ka_, on = vr(f,4), vr(f+4,4), vr(f+8,4), vr(vOn4,4)
                m16(vGr, xa, xa, first)
                if s == 0: h_reads(i, 3)
                m16(vSum, on, xa, first)
                m16(vCs, on, wa, first)
                if mode:
                    p1, p2 = ((xa, ka_), (on, ka_)) if isv else ((ka_, xa), (ka_, on))
                    m16(vD, p1[0], p1[1], first)
                    m16(vD2, p2[0], p2[1], first)
        a(f"s_nop {1 if mode else 3}")
        for r in range(1, 4):
            a(f"s_mov_b32 exec_lo, {0x00100001 << r:#x}\ns_mov_b32 exec_hi, {0x10000100 << r:#x}")
            a(f"v_mov_b32 v{vGr}, v{vGr+r}")
        a(f"""
        s_mov_b32 exec_lo, 0x00f0000f
        s_mov_b32 exec_hi, 0xf0000f00
        v_mul_f32 v{vSum}, {f32(1/512)}, v{vSum}
        v_mul_f32 v{vGr}, {f32(1/512)}, v{vGr}
        v_fma_f32 v{vGr}, -v{vSum}, v{vSum}, v{vGr}
        v_max_f32 v{vGr}, 0, v{vGr}
        v_add_f32 v{vGr}, {f32(1e-5)}, v{vGr}
        v_rsq_f32 v{vGr}, v{vGr}
        ds_write_b32 v18, v{vSum}
        ds_write_b32 v18, v{vCs} offset:512
        ds_write_b32 v18, v{vGr} offset:256
        s_mov_b64 exec, -1
        s_waitcnt lgkmcnt(0)
        s_barrier
        """)
        if mode == 0:
            a.comment("one helper wave clears this workgroup's share of the flags")
            a(f"""
            s_cmp_lt_u32 s{sRL}, 128
            s_cbranch_scc1 ka_rl
            s_xor_b32 s{sT}, s{sTQ}, 1
            s_cmp_lg_u32 s{sJ}, s{sT}
            s_cbranch_scc1 ka_done
            s_lshl_b32 s{sT}, s2, 8
            s_add_u32 s{sT}, s{sT}, {WS_FLAG}
            v_lshlrev_b32 v{vT}, 2, v{vL}
            v_mov_b32 v{vT2}, 0
            buffer_store_dword v{vT2}, v{vT}, s[{WS}:{WS+3}], s{sT} offen sc1
            s_branch ka_done
            """)
            a.label("ka_rl")
            a(f"""
            v_bfe_u32 v{vRT}, v{vL}, 2, 3
            v_lshrrev_b32 v{vT}, 5, v{vL}
            v_lshl_add_u32 v{vRT}, v{vT}, 4, v{vRT}
            v_lshlrev_b32 v{vRT}, 7, v{vRT}
            v_and_b32 v{vT}, 3, v{vL}
            v_lshl_add_u32 v{vRT}, v{vT}, 5, v{vRT}
            v_add_u32 v{vRT}, {LDS_RO}, v{vRT}
            s_lshl_b32 s{sT}, s{sRL}, 12
            s_add_u32 s{sT}, s{sT}, {WS_WO}
            """)
            for b in range(4):
                for e in range(2): a(f"ds_read_b64_tr_b16 {vr(vFr+4*b+2*e,2)}, v{vRT} offset:{e*1024 + b*8}")
            for b in range(4):
                a(f"s_waitcnt lgkmcnt({6-2*b})\nbuffer_store_dwordx4 {vr(vFr+4*b,4)}, v{vKA}, s[{WS}:{WS+3}], s{sT} offen offset:{b*1024} sc1")
            continue
        if isv:
            a("ds_read_b128 v[40:43], v15\nds_read_b128 v[44:47], v15 offset:256")
        else:
            a("ds_read_b32 v40, v18\nds_read_b32 v44, v18 offset:256")
        a("s_waitcnt lgkmcnt(0)")
        for r in range(4):
            a(f"v_fma_f32 v{vD+r}, -v{vD2+r}, v{40+(r if isv else 0)}, v{vD+r}")
        for r in range(4):
            a(f"v_mul_f32 v{vD+r}, v{vD+r}, v{44+(r if isv else 0)}")
        a(f"""
        v_cvt_pk_bf16_f32 v{vD}, v{vD}, v{vD+1}
        v_cvt_pk_bf16_f32 v{vD+1}, v{vD+2}, v{vD+3}
        buffer_store_dwordx2 {vr(vD,2)}, v16, s[{WS}:{WS+3}], s{sM} offen offset:{1024 if isv else 0} sc1
        """)
        if isv:
            a(f"""
            s_mov_b64 exec, 2
            v_mov_b32 v{vOn4}, 0
            v_mov_b32 v{vOn4+1}, 0
            v_mov_b32 v{vOn4+2}, 0
            v_mov_b32 v{vOn4+3}, 0
            s_mov_b64 exec, 3
            buffer_store_dwordx4 {vr(vOn4,4)}, v16, s[{WS}:{WS+3}], s{sM} offen offset:1536 sc1
            s_mov_b64 exec, -1
            """)
        a("s_branch ka_done")
    a.label("ka_done")
    if opt.get("stamp"):
        stamp(6)
        a("s_waitcnt vmcnt(0)")
        stamp(7)
        a(f"""
        s_waitcnt lgkmcnt(0)
        s_lshl_b32 s{sT}, s2, 3
        s_add_u32 s{sT}, s{sT}, s{sW}
        s_lshl_b32 s{sT}, s{sT}, 5
        s_add_u32 s{sT}, s{sT}, {WS_DBG}
        v_mov_b32 v1, 0
        """)
        for i in range(8): a(f"v_mov_b32 v{4+i}, s{60+2*i}")
        a(f"""
        buffer_store_dwordx4 v[4:7], v1, s[{WS}:{WS+3}], s{sT} offen
        buffer_store_dwordx4 v[8:11], v1, s[{WS}:{WS+3}], s{sT} offen offset:16
        """)
    a.label("ka_exit")
    a("s_endpgm")
```

```python
from asmlib import *
from layout import *
from ka import srd

KB_LDS = 163840
L_STG = 135168
L_OXH = L_STG
L_OXL = 159744
L_LNS = 162816
L_RED = 98304
FR = 114688
SPIN = 1 << 15

STAMPS = {"w0-3": ["start", "B1", "attn", "B4", "st1", "B5", "st2", "B6", "stored", "acked", "BA", "seen", "BB", "T0", "end"],
          "w4-7": ["start", "B1", "B3", "rl", "rlseen", "B4", "attn", "B6", "BA", "BC", "seen0", "seen6", "mm", "red", "end"]}

WS, X, OUT, RA, RB, RD = 28, 32, 36, 40, 44, 48
sW, sJ, sGRP, sMEM, sT, sT2, sT3, sO, sO2, sCNT, sMK, sMODE = 52, 53, 54, 55, 56, 57, 58, 59, 60, 61, 62, 98
vL, vL16, vT, vT2 = 1, 2, 3, 0

vQ, vK, vV, vP, vKA, vVA, vOXW, vIX, vS, vO, vC = 4, 8, 16, 32, 40, 43, 46, 47, 48, 80, 96

class VM:
    def __init__(self): self.n = 0; self.pos = {}
    def issue(self, key=None):
        self.n += 1
        if key is not None: self.pos[key] = self.n
    def cnt(self, key): return self.n - self.pos[key]

def ws(): return f"s[{WS}:{WS+3}]"

def gen_kb(a, name, opt):
    def stamp(i, wait=True):
        if opt.get("stamp"):
            a(f"{'s_memtime' if opt.get('cyc') else 's_memrealtime'} s[{64+2*i}:{65+2*i}]")
            if wait: a("s_waitcnt lgkmcnt(0)")
    def mf32(d, x, y, c): a(f"v_mfma_f32_32x32x16_bf16 {vr(d,16)}, {vr(x,4)}, {vr(y,4)}, {c if isinstance(c,str) else vr(c,16)}")

    def sm32(x, y): a(f"v_smfmac_f32_32x32x32_bf16 {vr(vO,16)}, {vr(x,4)}, {vr(y,8)}, v{vIX}")
    def attention(tag, hooks, extras):
        lg = VM()
        def rd_k(t):
            if t >= 64: return
            b, o = divmod(t, 30)
            a(f"ds_read_b128 {vr(vK+4*(t&1),4)}, v{vKA+b} offset:{o*KVT}"); lg.issue(("k", t))
        def rd_v(t, u):
            if t >= 64: return
            b, o = divmod(t, 30)
            a(f"ds_read_b128 {vr(vV+8*(t&1)+4*u,4)}, v{vVA+b} offset:{o*KVT+u*VH}"); lg.issue(("v", t, u))
        rd_k(0); rd_k(1); rd_v(0, 0); rd_v(0, 1); rd_v(1, 0)
        a(f"s_waitcnt lgkmcnt({lg.cnt(('k', 0))})")
        mf32(vS, vK, vQ, "0")
        rd_k(2)
        a("s_nop 10")
        for t in range(64):
            S, N = vS + 16*(t & 1), vS + 16*((t+1) & 1)
            ex = list(extras.get(t, []))
            def e(*idx):
                for i in idx: a(f"v_exp_f32 v{S+i}, v{S+i}")
            def extra():
                if ex: ex.pop(0)()
            if t in hooks: hooks[t]()
            e(0, 1)
            need = [("v", t, 0)] + ([("v", t-1, 1)] if t else []) + ([("k", t+1)] if t < 63 else [])
            a(f"s_waitcnt lgkmcnt({min(lg.cnt(k) for k in need)})")
            if t > 0: sm32(vV + 8*((t-1) & 1) + 4, N + 8)
            rd_v(t + 1, 1); extra()
            e(2, 3, 4)
            if t < 63: mf32(N, vK + 4*((t+1) & 1), vQ, "0")
            rd_k(t + 3); extra()
            e(5, 6, 7, 8, 9)
            sm32(vV + 8*(t & 1), S)
            rd_v(t + 2, 0); extra()
            e(10, 11, 12, 13, 14, 15)
            assert not ex
        a("s_waitcnt lgkmcnt(0)\ns_nop 0")
        sm32(vV + 8 + 4, vS + 16 + 8)
        a(f"""
        s_mov_b32 s{sT}, {f32(2.0**-64)}
        s_mov_b32 s{sT2}, {f32(2.0**64)}
        s_nop 11
        v_cmp_lt_f32 vcc, s{sT}, v{vO+8}
        v_cmp_gt_f32 s[96:97], s{sT2}, v{vO+8}
        v_rcp_f32 v{vT}, v{vO+8}
        s_and_b64 vcc, vcc, s[96:97]
        s_cmp_eq_u64 vcc, -1
        s_cbranch_scc0 slow_{tag}
        """)
        a.label(f"norm_{tag}")
        for r in range(8): a(f"v_mul_f32 v{vO+r}, v{vO+r}, v{vT}")
        for r in range(4): a(f"v_cvt_pk_bf16_f32 v{vP+r}, v{vO+2*r}, v{vO+2*r+1}")
        a(f"ds_write_b128 v{vOXW}, {vr(vP,4)}\ns_waitcnt lgkmcnt(0)")

    def slow_path(tag):
        a.label(f"slow_{tag}")
        vM = vC
        a(f"v_mov_b32 v{vM}, 0xff800000\ns_mov_b32 s{sT}, {WS_KV}")
        a.label(f"slow1_{tag}")
        a(f"buffer_load_dwordx4 {vr(vK,4)}, v{vKA}, {ws()}, s{sT} offen\ns_waitcnt vmcnt(0)")
        mf32(vS, vK, vQ, "0")
        a(f"s_add_u32 s{sT}, s{sT}, {KVT}\ns_nop 11")
        for r in range(8): a(f"v_max3_f32 v{vM}, v{vM}, v{vS+2*r}, v{vS+2*r+1}")
        a(f"""
        s_cmp_lg_u32 s{sT}, {WS_KV + 64*KVT}
        s_cbranch_scc1 slow1_{tag}
        v_mov_b32 v{vM+1}, v{vM}
        s_nop 1
        v_permlane32_swap_b32 v{vM}, v{vM+1}
        v_max_f32 v{vM}, v{vM}, v{vM+1}
        v_sub_f32 v{vM}, 0, v{vM}
        """)
        for r in range(1, 16): a(f"v_mov_b32 v{vM+r}, v{vM}")
        for r in range(16): a(f"v_mov_b32 v{vO+r}, 0")
        a(f"s_mov_b32 s{sT}, {WS_KV}")
        a.label(f"slow2_{tag}")
        a(f"""
        buffer_load_dwordx4 {vr(vK,4)}, v{vKA}, {ws()}, s{sT} offen
        buffer_load_dwordx4 {vr(vV,4)}, v{vVA}, {ws()}, s{sT} offen
        buffer_load_dwordx4 {vr(vV+4,4)}, v{vVA}, {ws()}, s{sT} offen offset:{VH}
        s_waitcnt vmcnt(0)
        """)
        mf32(vS, vK, vQ, vM)
        a(f"s_add_u32 s{sT}, s{sT}, {KVT}\ns_nop 11")
        for r in range(16): a(f"v_exp_f32 v{vS+r}, v{vS+r}")
        a("s_nop 1")
        sm32(vV, vS)
        sm32(vV + 4, vS + 8)
        a(f"""
        s_nop 15
        s_cmp_lg_u32 s{sT}, {WS_KV + 64*KVT}
        s_cbranch_scc1 slow2_{tag}
        v_rcp_f32 v{vT}, v{vO+8}
        s_branch norm_{tag}
        """)

    def poll(tag, vdst, vaddr, soff, need, mask, sleep=0):
        a(f"s_mov_b32 s{sCNT}, {SPIN}")
        a.label(f"poll_{tag}")
        a(f"v_cmp_le_u32 vcc, {need}, v{vdst}\ns_sub_u32 s{sCNT}, s{sCNT}, 1\ns_cbranch_scc1 done_{tag}")
        if mask is None:
            a("s_cmp_eq_u64 vcc, -1")
        else:
            a(f"s_and_b32 s{sT}, vcc_lo, s{mask}\ns_cmp_eq_u32 s{sT}, s{mask}")
        a(f"s_cbranch_scc1 done_{tag}")
        if sleep: a(f"s_sleep {sleep}")
        a(f"buffer_load_dword v{vdst}, v{vaddr}, {ws()}, s{soff} offen sc1\ns_waitcnt vmcnt(0)")
        a(f"s_branch poll_{tag}")
        a.label(f"done_{tag}")

    a.label(name)
    a(f"""
    s_cmp_ge_u32 s2, 256
    s_cbranch_scc1 kb_exit
    s_load_dwordx2 s[24:25], s[0:1], 88
    s_load_dwordx16 s[4:19], s[0:1], 0
    s_load_dwordx4 s[20:23], s[0:1], 64
    """)
    stamp(0, wait=False)
    a(f"""
    v_lshrrev_b32 v{vT}, 6, v0
    v_and_b32 v{vL}, 63, v0
    s_lshr_b32 s{sT}, s2, 3
    v_readfirstlane_b32 s{sW}, v{vT}
    s_and_b32 s{sMEM}, s{sT}, 15
    s_lshr_b32 s{sT}, s{sT}, 4
    s_and_b32 s{sGRP}, s2, 7
    s_lshl_b32 s{sGRP}, s{sGRP}, 1
    s_add_u32 s{sGRP}, s{sGRP}, s{sT}
    v_lshlrev_b32 v{vL16}, 4, v{vL}
    s_and_b32 s{sJ}, s{sW}, 3
    s_lshl_b32 s{sT}, s{sGRP}, 4
    s_add_u32 s{sT}, s{sT}, s{sMEM}
    s_lshl_b32 s{sT}, s{sT}, 3
    s_add_u32 s{sT}, s{sT}, s{sW}
    s_lshl_b32 s{sT}, s{sT}, 10
    s_lshl_b32 s{sO}, s{sJ}, 10
    s_waitcnt lgkmcnt(0)
    """)
    srd(a, WS, 24, WS_SIZE)
    a(f"""
    buffer_load_dwordx4 {vr(vQ,4)}, v{vL16}, {ws()}, s{sT} offen
    s_cmp_ge_u32 s{sW}, 4
    s_cbranch_scc1 kb_grpb
    """)
    def attn_addrs(oxbase):
        a(f"""
        v_mov_b32 v{vKA}, v{vL16}
        v_add_u32 v{vKA+1}, {30*KVT}, v{vL16}
        v_add_u32 v{vKA+2}, {60*KVT}, v{vL16}
        v_lshrrev_b32 v{vT}, 5, v{vL}
        v_and_b32 v{vVA}, 15, v{vL}
        v_lshlrev_b32 v{vVA}, 4, v{vVA}
        v_lshl_add_u32 v{vVA}, v{vT}, 8, v{vVA}
        s_mov_b32 exec_lo, 0xffff0000
        s_mov_b32 exec_hi, 0xffff0000
        v_mov_b32 v{vVA}, 0x210
        s_mov_b32 exec_lo, 0x00110000
        s_mov_b32 exec_hi, 0x00110000
        v_mov_b32 v{vVA}, 0x200
        s_mov_b64 exec, -1
        v_mov_b32 v{vIX}, 0xdddddddd
        v_add_u32 v{vVA}, 0x400, v{vVA}
        v_add_u32 v{vVA+1}, {30*KVT}, v{vVA}
        v_add_u32 v{vVA+2}, {60*KVT}, v{vVA}
        s_lshl_b32 s{sT}, s{sJ}, 10
        s_add_u32 s{sT}, s{sT}, {oxbase}
        v_lshl_add_u32 v{vOXW}, v{vT}, 7, s{sT}
        v_bfe_u32 v{vT}, v{vL}, 3, 2
        v_lshl_add_u32 v{vOXW}, v{vT}, 8, v{vOXW}
        v_and_b32 v{vT}, 7, v{vL}
        v_lshl_add_u32 v{vOXW}, v{vT}, 4, v{vOXW}
        """)
        for r in range(16): a(f"v_mov_b32 v{vO+r}, 0")
    R1, R2 = opt.get("r1", 3), opt.get("r2", 10)
    def first_tile_needing(nbytes):
        for t in range(64):
            if (t + 3)*KVT + 1024 > nbytes: return t
    R3 = 22
    TB2, TB3, TB4 = first_tile_needing(R1*4096), first_tile_needing(R2*4096), first_tile_needing(R3*4096)

    a(f"s_setprio 2\ns_lshl_b32 s{sO}, s{sJ}, 17\ns_add_u32 s{sO}, s{sO}, {WS_WO}")
    attn_addrs(L_OXL)
    a("s_waitcnt vmcnt(0)\ns_barrier")
    stamp(1)
    vAc, vB, vOXR, vHO, vLW, vLR, vFO, vWR = 8, 40, 52, 53, 54, 55, 56, 59
    wreg = lambda f: 64 + 4*((f + 12) % 48)
    vm = VM()
    def wo_load(f):
        if f and f % 4 == 0: a(f"s_add_u32 s{sO}, s{sO}, 0x1000")
        a(f"buffer_load_dwordx4 {vr(wreg(f),4)}, v{vL16}, {ws()}, s{sO} offen offset:{(f%4)*1024}"); vm.issue(f)
    TRY = opt.get("try", 22)
    bar = lambda: a("s_barrier")
    extras = {TRY + i: [lambda f=2*i: wo_load(f), lambda f=2*i+1: wo_load(f)] for i in range(18)}
    attention("a", {TB2: bar, TB3: bar, TB4: bar}, extras)
    stamp(2)
    a(f"s_setprio {opt.get('hprio', 2)}\ns_barrier")
    stamp(3)
    srd(a, X, 4, 2048*1024)
    a(f"""
    v_and_b32 v{vT}, 7, v{vL}
    v_lshrrev_b32 v{vT2}, 4, v{vL}
    v_lshlrev_b32 v60, 10, v{vT}
    v_lshl_add_u32 v60, v{vT2}, 6, v60
    s_lshl_b32 s{sT}, s{sGRP}, 4
    s_add_u32 s{sT}, s{sT}, s{sMEM}
    s_lshl_b32 s{sT}, s{sT}, 13
    s_lshl_b32 s{sT2}, s{sJ}, 8
    s_add_u32 s{sT}, s{sT}, s{sT2}
    """)
    vX = wreg(44)
    for i in range(4): a(f"buffer_load_dwordx4 {vr(vX+4*i,4)}, v60, s[{X}:{X+3}], s{sT} offen offset:{16*i}")
    a(f"""
    v_and_b32 v61, 15, v{vL}
    v_lshlrev_b32 v61, 2, v61
    s_lshl_b32 s{sT}, s{sGRP}, 7
    s_add_u32 s{sT}, s{sT}, {WS_FLAG + FL_XID}
    buffer_load_dword v62, v61, {ws()}, s{sT} offen sc1
    """)
    for f in range(36, 44): wo_load(f)
    a(f"""
    v_lshlrev_b32 v{vLR}, 4, v{vT}
    v_lshl_add_u32 v{vOXR}, v{vT2}, 7, v{vLR}
    v_add_u32 v{vOXR}, {L_OXH}, v{vOXR}
    v_lshrrev_b32 v{vT2}, 3, v{vL}
    v_lshl_add_u32 v{vHO}, v{vT2}, 10, v{vLR}
    v_add_u32 v{vLR}, {L_LNS}, v{vLR}
    v_lshrrev_b32 v{vT2}, 5, v{vL}
    v_lshl_add_u32 v{vLW}, v{vT2}, 7, v{vLR}
    s_lshl_b32 s{sT}, s{sJ}, 2
    v_add_u32 v{vLW}, s{sT}, v{vLW}
    s_lshl_b32 s{sCNT}, s{sJ}, 14
    s_add_u32 s{sCNT}, s{sCNT}, 0x8000
    v_add_u32 v{vWR}, s{sCNT}, v{vL16}
    s_getreg_b32 s{sT}, hwreg(HW_REG_XCC_ID, 0, 4)
    s_add_u32 s{sT}, s{sT}, 1
    s_waitcnt vmcnt(8)
    v_cmp_eq_u32 vcc, s{sT}, v62
    v_mov_b32 v{vFO}, 0x40000000
    v_mov_b32 v{vFO+1}, 0x40000000
    s_cmp_eq_u64 vcc, -1
    s_cselect_b32 s{sMODE}, {0 if opt.get("slowmode") else 1}, 0
    s_cmp_eq_u32 s{sMODE}, 1
    s_cselect_b32 s{sT}, 0, 0x40000000
    s_cselect_b32 s{sT2}, 0x40000000, 0
    v_writelane_b32 v{vFO}, s{sT}, 0
    v_writelane_b32 v{vFO+1}, s{sT2}, 0
    """)
    for i in range(16):
        a(f"v_lshlrev_b32 v{vAc+2*i}, 16, v{vX+i}\nv_and_b32 v{vAc+2*i+1}, 0xffff0000, v{vX+i}")
    for f in range(44, 48): wo_load(f)
    a(f"""
    s_mul_i32 s{sMK}, s{sMEM}, {7*32768}
    s_and_b32 s{sT2}, s{sGRP}, 1
    s_lshl_b32 s{sT2}, s{sT2}, 2
    s_add_u32 s{sT2}, s{sT2}, s{sJ}
    s_mul_i32 s{sT2}, s{sT2}, {24*1024}
    s_add_u32 s{sMK}, s{sMK}, s{sT2}
    s_add_u32 s{sMK}, s{sMK}, {WS_WGU + 32768}
    v_mov_b32 v63, 0x40000000
    s_mov_b64 exec, 0xffff
    v_lshlrev_b32 v63, 7, v{vL}
    s_mov_b64 exec, -1
    """)
    def oproj(k0):
        lg = VM()
        def ox_read(ks):
            off = (L_OXL - L_OXH) + ks*512 if ks < 8 else (ks - 8)*512
            a(f"ds_read_b128 {vr(vB+4*(ks%3),4)}, v{vOXR} offset:{off}"); lg.issue(("o", ks))
        ox_read(k0); ox_read(k0 + 1)
        for ks in range(k0, k0 + 8):
            a(f"s_waitcnt lgkmcnt({lg.cnt(('o', ks))})" + (f" vmcnt({vm.cnt(8*ks+7)})" if ks < 8 else ""))
            for jt in range(8):
                f = 8*ks + jt
                a(f"v_mfma_f32_16x16x32_bf16 {vr(vAc+4*jt,4)}, {vr(wreg(f),4)}, {vr(vB+4*(ks%3),4)}, {vr(vAc+4*jt,4)}")
                if jt == 0 and ks + 2 < k0 + 8: ox_read(ks + 2)
                if f + 48 < 112:
                    wo_load(f + 48)
                    if f % 5 == 2 and f//5 < 12:
                        a(f"buffer_load_dword v62, v63, {ws()}, s{sMK} offen offset:{(f//5 & 1)*2048} sc1"); vm.issue()
                        if f//5 & 1: a(f"s_add_u32 s{sMK}, s{sMK}, 0x1000")
                elif 72 <= f < 104 and f & 1:
                    g = 112 + (f - 72)//2
                    a(f"ds_read_b128 {vr(wreg(g),4)}, v{vWR} offset:{(g-112)*1024}"); lg.issue()
    oproj(0)
    stamp(4)
    slot = [0, 3, 1, 2, 4, 0, 3]
    sG = 63
    def gu_base():
        a(f"""
        s_mul_i32 s{sG}, s{sMEM}, {7*32768}
        s_lshl_b32 s{sT3}, s{sJ}, 13
        s_add_u32 s{sG}, s{sG}, s{sT3}
        s_add_u32 s{sG}, s{sG}, {WS_WGU}
        """)
    def gu_dma(t):
        for i in range(8):
            if i % 4 == 0:
                a(f"s_add_u32 m0, s{sT3}, {slot[t]*32768 + (i//4)*4096}\ns_add_u32 s{sT}, s{sG}, {t*32768 + (i//4)*4096}")
            a(f"buffer_load_dwordx4 v{vL16}, {ws()}, s{sT} offen offset:{(i%4)*1024} sc1 lds")
    sHN, sFL = sO2, 27
    a(f"""
    s_lshl_b32 s{sT}, s{sGRP}, 2
    s_lshr_b32 s{sT2}, s{sMEM}, 2
    s_add_u32 s{sT}, s{sT}, s{sT2}
    s_lshl_b32 s{sFL}, s{sT}, 8
    s_lshl_b32 s{sHN}, s{sT}, 15
    s_lshl_b32 s{sT}, s{sJ}, 13
    s_add_u32 s{sHN}, s{sHN}, s{sT}
    s_and_b32 s{sT2}, s{sMEM}, 3
    s_lshl_b32 s{sT}, s{sT2}, 7
    s_add_u32 s{sHN}, s{sHN}, s{sT}
    s_add_u32 s{sHN}, s{sHN}, {WS_HN}
    s_lshl_b32 s{sT2}, s{sT2}, 2
    s_add_u32 s{sT2}, s{sT2}, s{sJ}
    s_lshl_b32 s{sT2}, s{sT2}, 2
    s_add_u32 s{sFL}, s{sFL}, s{sT2}
    s_add_u32 s{sFL}, s{sFL}, {WS_FLAG + FL_HN}
    s_add_u32 s{sT}, s{sFL}, {FL_ACT - FL_HN}
    buffer_load_dword v62, v{vHO}, {ws()}, s{sHN} offen sc1
    buffer_load_dword v62, v{vHO}, {ws()}, s{sHN} offen offset:512 sc1
    buffer_load_dword v62, v{vFO}, {ws()}, s{sFL} offen sc1
    buffer_load_dword v62, v{vFO}, {ws()}, s{sT} offen sc1
    """)
    gu_base()
    a("s_barrier")
    for i in range(16):
        if i % 4 == 0: a(f"s_add_u32 m0, s{sCNT}, {i*1024}\ns_add_u32 s{sO}, s{sO}, 0x1000")
        a(f"buffer_load_dwordx4 v{vL16}, {ws()}, s{sO} offen offset:{(i%4)*1024} lds")
    gu_dma(0)
    a("s_waitcnt vmcnt(0)\ns_setprio 3\ns_barrier")
    stamp(5)
    oproj(8)
    stamp(6)
    a("s_nop 2\ns_mov_b32 exec_lo, 0xff00ff00\ns_mov_b32 exec_hi, 0xff00ff00")
    for i in range(16): a(f"v_mov_b32 v{vAc+i}, v{vAc+16+i}")
    a("s_mov_b64 exec, -1")
    s0, s1, q0, q1, vH, vN = 64, 65, 66, 67, 120, 80
    a(f"v_add_f32 v{s0}, v{vAc}, v{vAc+2}\nv_add_f32 v{s1}, v{vAc+1}, v{vAc+3}")
    a(f"v_mul_f32 v{q0}, v{vAc}, v{vAc}\nv_mul_f32 v{q1}, v{vAc+1}, v{vAc+1}")
    for i in range(2, 16):
        if i >= 4: a(f"v_add_f32 v{s0+(i&1)}, v{s0+(i&1)}, v{vAc+i}")
        a(f"v_fmac_f32 v{q0+(i&1)}, v{vAc+i}, v{vAc+i}")
    a(f"""
    v_add_f32 v{s0}, v{s0}, v{s1}
    v_add_f32 v{q0}, v{q0}, v{q1}
    v_cvt_pk_bf16_f32 v{vH}, v{vAc}, v{vAc+1}
    v_cvt_pk_bf16_f32 v{vH+1}, v{vAc+2}, v{vAc+3}
    v_permlane32_swap_b32 v{s0}, v{q0}
    v_add_f32 v{s0}, v{s0}, v{q0}
    v_cvt_pk_bf16_f32 v{vH+2}, v{vAc+4}, v{vAc+5}
    v_cvt_pk_bf16_f32 v{vH+3}, v{vAc+6}, v{vAc+7}
    v_add_f32_dpp v{s0}, v{s0}, v{s0} row_ror:8 row_mask:0xf bank_mask:0xf
    v_mov_b32 v{s1}, v{s0}
    v_cvt_pk_bf16_f32 v{vH+4}, v{vAc+8}, v{vAc+9}
    v_cvt_pk_bf16_f32 v{vH+5}, v{vAc+10}, v{vAc+11}
    v_permlane16_swap_b32 v{s0}, v{s1}
    v_add_f32 v{s0}, v{s0}, v{s1}
    ds_write_b32 v{vLW}, v{s0}
    v_cvt_pk_bf16_f32 v{vH+6}, v{vAc+12}, v{vAc+13}
    v_cvt_pk_bf16_f32 v{vH+7}, v{vAc+14}, v{vAc+15}
    s_waitcnt lgkmcnt(0)
    s_barrier
    """)
    stamp(7)
    a(f"""
    ds_read_b128 v[64:67], v{vLR}
    ds_read_b128 v[68:71], v{vLR} offset:128
    s_add_u32 s26, s{sHN}, {WS_H - WS_HN}
    v_mov_b32 v58, 1
    s_waitcnt lgkmcnt(0)
    v_add_f32 v64, v64, v65
    v_add_f32 v68, v68, v69
    v_add_f32 v66, v66, v67
    v_add_f32 v70, v70, v71
    v_add_f32 v64, v64, v66
    v_add_f32 v68, v68, v70
    v_mul_f32 v64, {f32(1/512)}, v64
    v_mul_f32 v68, {f32(1/512)}, v68
    v_fma_f32 v68, -v64, v64, v68
    v_max_f32 v68, 0, v68
    v_add_f32 v68, {f32(1e-5)}, v68
    v_rsq_f32 v68, v68
    s_nop 0
    v_mul_f32 v68, {f32(LOG2E)}, v68
    v_mul_f32 v64, v64, v68
    """)
    for i in range(16): a(f"v_fma_f32 v{vAc+i}, v{vAc+i}, v68, -v64")
    a(f"s_cmp_eq_u32 s{sMODE}, 1")
    for i in range(8): a(f"v_cvt_pk_bf16_f32 v{vN+i}, v{vAc+2*i}, v{vAc+2*i+1}")
    a("s_cbranch_scc0 kb_hn_far")
    def hn_store(fl):
        for h in range(2): a(f"buffer_store_dwordx4 {vr(vN+4*h,4)}, v{vHO}, {ws()}, s{sHN} offen offset:{512*h}{fl}")
    hn_store("")
    a.label("kb_hn_back")
    stamp(8)
    vPL, vPA, vA0, vAcc, vAR, vE, vPk, vHN = 4, 5, 6, 16, 64, 96, 112, 128
    sAC, sAF = sO, sMK
    a(f"""
    s_lshl_b32 s{sT}, s{sGRP}, 2
    s_add_u32 s{sT}, s{sT}, s{sJ}
    s_mul_i32 s{sAC}, s{sT}, {FR}
    s_mul_i32 s{sT2}, s{sMEM}, {7*1024}
    s_add_u32 s{sAC}, s{sAC}, s{sT2}
    s_add_u32 s{sAC}, s{sAC}, {WS_ACT}
    s_lshl_b32 s{sG}, s{sT}, 15
    s_add_u32 s{sG}, s{sG}, {WS_HN}
    s_lshl_b32 s{sT}, s{sT}, 8
    s_lshl_b32 s{sT2}, s{sMEM}, 2
    s_add_u32 s{sAF}, s{sT}, s{sT2}
    s_add_u32 s{sAF}, s{sAF}, {WS_FLAG + FL_ACT}
    s_add_u32 s{sT2}, s{sT}, {WS_FLAG + FL_HN}
    v_and_b32 v{vPA}, 15, v{vL}
    v_lshlrev_b32 v{vPA}, 2, v{vPA}
    v_mov_b32 v{vPL}, 0
    v_add_u32 v{vA0+1}, 0x10000, v{vL16}
    v_mov_b32 v9, v{vFO}
    v_mov_b32 v10, v{vFO+1}
    v_mov_b32 v13, v{vHO}
    v_add_u32 v{vA0+2}, 0x20000, v{vL16}
    s_waitcnt vmcnt(0)
    """)
    stamp(9)
    vFO2, vFV, vHO2 = 9, 11, 13
    def flag(v, soff):
        return f"buffer_store_dword v{v}, v{vFO2}, {ws()}, s{soff} offen\nbuffer_store_dword v{v}, v{vFO2+1}, {ws()}, s{soff} offen sc1"
    a(flag(58, sFL))
    a("s_barrier")
    stamp(10)
    poll("hn", vPL, vPA, sT2, 1, None)
    stamp(11)
    vm = VM()
    def hn_load(s):
        if s and s % 4 == 0: a(f"s_add_u32 s{sG}, s{sG}, 0x1000")
        a(f"buffer_load_dwordx4 {vr(vHN+4*s,4)}, v{vL16}, {ws()}, s{sG} offen offset:{(s%4)*1024} sc1"); vm.issue(("hn", s))
    HL = opt.get("hl", 14)
    for s in range(HL): hn_load(s)
    seq = [(t, s) for s in range(32) for t in (0, 1)] + [(t, s) for t in range(2, 7) for s in range(32)]
    LA = 7
    def a_read(n):
        t, s = seq[n]
        base = {0: vL16, 1: vA0+1, 2: vA0+2}[slot[t] >> 1]
        a(f"ds_read_b128 {vr(vAR+4*(n%8),4)}, v{base} offset:{(slot[t]&1)*32768 + s*1024}")
    sLG = sT3
    a(f"s_mov_b32 s{sLG}, {f32(LOG2E)}")
    def epilogue(t):
        A, pk = vAcc + 16*(t % 3), vPk + 4*(t & 1)
        ops = []
        for r in range(8): ops.append(f"v_exp_f32 v{vE+r}, -v{A+r}")
        for r in range(8): ops.append(f"v_fma_f32 v{vE+r}, v{vE+r}, s{sLG}, s{sLG}")
        for r in range(8): ops.append(f"v_rcp_f32 v{vE+r}, v{vE+r}")
        for r in range(8): ops.append(f"v_mul_f32 v{vE+r}, v{vE+r}, v{A+8+r}")
        for r in range(4): ops.append(f"v_cvt_pk_bf16_f32 v{pk+r}, v{vE+2*r}, v{vE+2*r+1}")
        return ops
    def act_store(t):
        if t == 4: a(f"s_add_u32 s{sAC}, s{sAC}, 0x1000")
        a(f"buffer_store_dwordx4 {vr(vPk+4*(t&1),4)}, v{vL16}, {ws()}, s{sAC} offen offset:{(t%4)*1024} sc1"); vm.issue(("st", t))
    def publish(n):
        a(f"s_waitcnt vmcnt({vm.cnt(('st', n-1))})\n" + flag(vFV + (n & 1), sAF)); vm.issue(); vm.issue()
    cost = lambda op: 8 if op.startswith(("v_exp", "v_rcp")) else 4
    for n in range(LA): a_read(n)
    pend = []
    PUB = {(4, 2): 2, (4, 30): 3, (5, 30): 4, (6, 30): 5}
    for n, (t, s) in enumerate(seq):
        if t >= 2 and s == 4:
            for te in ([0, 1] if t == 2 else [t - 1]):
                pend += [("v", o) for o in epilogue(te)] + [("m", te)]
        w = f"lgkmcnt({min(LA - 1, len(seq) - 1 - n)})"
        if n < 64 and t == 0: w += f" vmcnt({vm.cnt(('hn', s))})"
        a("s_waitcnt " + w)
        A = vAcc + 16*(t % 3)
        mf32(A, vAR + 4*(n % 8), vHN + 4*s, "0" if s == 0 else A)
        if n + LA < len(seq):
            if seq[n + LA] == (4, 0): a(f"s_waitcnt vmcnt({vm.cnt('h')})")
            if seq[n + LA] in ((4, 0), (5, 0)): a("s_barrier")
            a_read(n + LA)
        if t == 0 and s + HL < 32: hn_load(s + HL)
        if t == 1 and s in (20, 21):
            a(f"buffer_store_dwordx4 {vr(vH+4*(s-20),4)}, v{vHO2}, {ws()}, s26 offen offset:{512*(s-20)} sc1"); vm.issue("h")
        if (t, s) == (1, 31):
            a("s_barrier"); stamp(12, wait=False)
        if (t, s + 1) in PUB: a(f"v_mov_b32 v{vFV + (PUB[(t, s+1)] & 1)}, {PUB[(t, s+1)]}")
        if (t, s) in PUB: publish(PUB[(t, s)])
        elif pend and pend[0][0] == "m": act_store(pend.pop(0)[1])
        else:
            budget = 16
            while pend and pend[0][0] == "v" and budget >= cost(pend[0][1]):
                budget -= cost(pend[0][1]); a(pend.pop(0)[1])
        if s == 31: assert not pend or t < 2, (t, len(pend))
    stamp(13)
    a(f"v_mov_b32 v{vFV}, 6\ns_nop 10")
    for o in epilogue(6): a(o)
    act_store(6)
    publish(6)
    a(f"v_mov_b32 v{vFV+1}, 7")
    publish(7)
    a("s_branch kb_done")
    a.label("kb_hn_far")
    hn_store(" sc1")
    a("s_branch kb_hn_back")
    slow_path("a")

    a.label("kb_grpb")
    a(f"s_setprio 3\ns_add_u32 s{sO2}, s{sO}, {WS_KV}")
    def kv_round(r):
        a(f"s_add_u32 m0, s{sO}, {r*4096}\ns_add_u32 s{sT}, s{sO2}, {r*4096}")
        a(f"buffer_load_dwordx4 v{vL16}, {ws()}, s{sT} offen lds")
    N1 = 12
    for r in range(N1): kv_round(r)
    vSA, vSD, vTR, vTD, vRO = 100, 101, 102, 103, 104
    sST, sD1, sD2, sS1, sS2 = 63, 26, 27, sT3, sMK
    srd(a, RA, 16, 512*3584); srd(a, RB, 18, 512*3584); srd(a, RD, 20, 1792*1024)
    a(f"""
    s_mul_i32 s{sST}, s{sJ}, 6144
    s_add_u32 s{sST}, s{sST}, {L_STG}
    v_lshrrev_b32 v{vT}, 3, v{vL}
    v_and_b32 v{vT2}, 7, v{vL}
    v_mul_u32_u24 v{vSA}, 3584, v{vT}
    v_lshl_add_u32 v{vSA}, v{vT2}, 4, v{vSA}
    v_lshlrev_b32 v{vSD}, 10, v{vT}
    v_lshl_add_u32 v{vSD}, v{vT2}, 4, v{vSD}
    s_lshl_b32 s{sCNT}, s2, 2
    s_add_u32 s{sCNT}, s{sCNT}, s{sJ}
    s_and_b32 s{sT2}, s{sCNT}, 31
    s_lshr_b32 s{sT}, s{sCNT}, 5
    s_lshl_b32 s{sD1}, s{sT}, 17
    s_lshl_b32 s{sS1}, s{sT}, 7
    s_lshl_b32 s{sT}, s{sT2}, 10
    s_add_u32 s{sD1}, s{sD1}, s{sT}
    s_add_u32 s{sD1}, s{sD1}, {WS_WGU}
    s_mul_i32 s{sT2}, s{sT2}, {16*3584}
    s_add_u32 s{sS1}, s{sS1}, s{sT2}
    s_and_b32 s{sT2}, s{sCNT}, 7
    s_lshr_b32 s{sT}, s{sCNT}, 3
    s_mul_i32 s{sD2}, s{sT2}, {2*FR}
    s_lshl_b32 s{sS2}, s{sT2}, 7
    s_lshl_b32 s{sT2}, s{sT}, 10
    s_add_u32 s{sD2}, s{sD2}, s{sT2}
    s_add_u32 s{sD2}, s{sD2}, {WS_WD}
    s_lshl_b32 s{sT}, s{sT}, 14
    s_add_u32 s{sS2}, s{sS2}, s{sT}
    v_bfe_u32 v{vT}, v{vL}, 2, 2
    v_lshrrev_b32 v{vT2}, 5, v{vL}
    v_lshl_add_u32 v{vT}, v{vT2}, 3, v{vT}
    v_lshl_add_u32 v{vTR}, v{vT}, 7, s{sST}
    v_bfe_u32 v{vT}, v{vL}, 1, 1
    v_lshl_add_u32 v{vTR}, v{vT}, 3, v{vTR}
    v_bfe_u32 v{vT}, v{vL}, 4, 1
    v_lshl_add_u32 v{vTD}, v{vT}, 4, v{vTR}
    v_lshl_add_u32 v{vTR}, v{vT}, 11, v{vTR}
    v_and_b32 v{vT}, 1, v{vL}
    v_lshl_add_u32 v{vTR}, v{vT}, 4, v{vTR}
    v_lshl_add_u32 v{vTD}, v{vT}, 5, v{vTD}
    """)
    attn_addrs(L_OXH)
    a(f"s_waitcnt vmcnt({N1 - R1})\ns_barrier")
    stamp(1)
    for r in range(N1, R3): kv_round(r)
    a(f"s_waitcnt vmcnt({R3 - R2})\ns_barrier")
    for i in range(6):
        r = (RA, RA, RB, RB, RD, RD)[i]
        base, step, va = (sS1, 8*3584, vSA) if i < 4 else (sS2, 8192, vSD)
        a(f"s_add_u32 m0, s{sST}, {i*1024}\ns_add_u32 s{sT}, s{base}, {step*(i&1)}\nbuffer_load_dwordx4 v{va}, s[{r}:{r+3}], s{sT} offen lds")
    for r in range(R3, 33): kv_round(r)
    a(f"s_waitcnt vmcnt({33 - R3})\ns_cmp_ge_u32 s2, 224\ns_cbranch_scc1 kb_rl_done")
    for b in range(6):
        for e in range(2):
            va, off = (vTR, e*512 + b*32) if b < 4 else (vTD, 4096 + e*512 + (b-4)*64)
            a(f"ds_read_b64_tr_b16 {vr(vRO+4*b+2*e,2)}, v{va} offset:{off}")
    for b in range(6):
        d = sD1 if b < 4 else sD2
        a(f"s_waitcnt lgkmcnt({10-2*b})")
        a(f"buffer_store_dwordx4 {vr(vRO+4*b,4)}, v{vL16}, {ws()}, s{d} offen sc1")
        if b not in (3, 5): a(f"s_add_u32 s{d}, s{d}, {0x8000 if b < 4 else FR}")
    a.label("kb_rl_done")
    a(f"""
    s_getreg_b32 s{sT2}, hwreg(HW_REG_XCC_ID, 0, 4)
    s_add_u32 s{sT2}, s{sT2}, 1
    s_lshl_b32 s{sT}, s{sGRP}, 5
    s_add_u32 s{sT}, s{sT}, s{sMEM}
    s_lshl_b32 s{sT}, s{sT}, 2
    s_add_u32 s{sT}, s{sT}, {WS_FLAG + FL_XID}
    v_mov_b32 v100, 1
    v_mov_b32 v101, 0
    v_mov_b32 v102, s{sT2}
    s_mov_b64 exec, 1
    s_cmp_lg_u32 s{sJ}, 0
    s_cbranch_scc1 kb_noxid
    buffer_store_dword v102, v101, {ws()}, s{sT} offen sc1
    """)
    a.label("kb_noxid")
    a("s_barrier"); stamp(2)
    a(f"""
    s_and_b32 s{sT}, s2, 31
    s_lshl_b32 s{sT}, s{sT}, 7
    s_add_u32 s{sT}, s{sT}, {WS_FLAG + FL_RL}
    s_waitcnt vmcnt(0)
    buffer_atomic_add v100, v101, {ws()}, s{sT} offen sc0 sc1
    v_mov_b32 v102, 1
    s_mov_b32 s{sT}, {WS_FLAG + FL_RL + 0x1000}
    s_waitcnt vmcnt(0)
    v_readfirstlane_b32 s{sT2}, v100
    s_cmp_lg_u32 s{sT2}, 31
    s_cbranch_scc1 kb_rl_sent
    buffer_atomic_add v102, v101, {ws()}, s{sT} offen sc0 sc1
    s_waitcnt vmcnt(0)
    v_readfirstlane_b32 s{sT2}, v102
    s_cmp_lg_u32 s{sT2}, 31
    s_cbranch_scc1 kb_rl_sent
    s_mov_b64 exec, 0xffff
    v_lshlrev_b32 v101, 7, v{vL}
    v_mov_b32 v102, 1
    buffer_store_dword v102, v101, {ws()}, s{sT} offen offset:2048 sc1
    """)
    a.label("kb_rl_sent")
    a(f"""
    s_mov_b64 exec, -1
    v_mov_b32 v115, 0
    v_mov_b32 v114, 0
    """)
    stamp(3)
    vW0, vW1, vWD, vAT, vAC4, vHh = 112, 113, 144, 80, 16, 8
    sWD, sAT = sO, sO2
    def wd_addrs():
        a(f"""
        s_and_b32 s{sT}, s{sJ}, 1
        s_mul_i32 s{sT2}, s{sT}, {FR}
        v_add_u32 v{vW0}, s{sT2}, v{vL16}
        s_sub_u32 s{sT2}, {FR}, s{sT2}
        v_add_u32 v{vW1}, s{sT2}, v{vL16}
        """)
    a(f"""
    s_and_b32 s{sT}, s{sMEM}, 7
    s_mul_i32 s{sWD}, s{sT}, {2*FR}
    s_mul_i32 s{sT}, s{sJ}, {28*1024}
    s_add_u32 s{sWD}, s{sWD}, s{sT}
    s_add_u32 s{sWD}, s{sWD}, {WS_WD}
    """)
    wd_addrs()
    vm = VM()
    def koff(u): return (7*(u & 3) + (u >> 2))*1024
    def wd_load(u):
        a(f"s_add_u32 s{sT}, s{sWD}, {koff(u)}")
        for n in range(2):
            a(f"buffer_load_dwordx4 {vr(vWD+8*(u%14)+4*n,4)}, v{(vW0, vW1)[n]}, {ws()}, s{sT} offen sc1")
            vm.issue(("w", u))
    def ready():
        a(f"s_lshl_b32 s{sT2}, s{sGRP}, 7\ns_add_u32 s{sT2}, s{sT2}, {WS_FLAG + FL_RL + 0x1800}")
        poll("rl", 114, 115, sT2, 1, None, sleep=4)
        stamp(4)
        for u in range(14): wd_load(u)
    def mid():
        a("s_barrier"); stamp(5)
    TX = -(-3*32768 // KVT) + 1
    a("s_setprio 1")
    attention("b", {opt.get("n0a", 1): lambda: (bar(), ready()), opt.get("n0", 2): mid, TX: bar}, {})
    stamp(6)
    gu_base()
    a("s_barrier")
    gu_dma(1)
    a("s_barrier")
    stamp(7)
    gu_dma(2); gu_dma(3)
    a("s_waitcnt vmcnt(8)\ns_barrier")
    stamp(8)
    a("s_waitcnt vmcnt(0)\ns_barrier")
    gu_dma(4); gu_dma(5); gu_dma(6)
    vW0, vW1, vA0_, vA1_, vPL4, vPA4 = 4, 5, 6, 7, 0, 3
    wd_addrs()
    sFA, sHH = sT3, 63
    a(f"""
    s_lshr_b32 s{sT}, s{sJ}, 1
    s_mul_i32 s{sT2}, s{sT}, {FR}
    v_add_u32 v{vA0_}, s{sT2}, v{vL16}
    s_sub_u32 s{sT2}, {FR}, s{sT2}
    v_add_u32 v{vA1_}, s{sT2}, v{vL16}
    s_lshr_b32 s{sT2}, s{sMEM}, 3
    s_lshl_b32 s{sCNT}, s{sGRP}, 1
    s_add_u32 s{sCNT}, s{sCNT}, s{sT2}
    s_lshl_b32 s{sCNT}, s{sCNT}, 1
    s_lshl_b32 s{sFA}, s{sCNT}, 8
    s_add_u32 s{sFA}, s{sFA}, {WS_FLAG + FL_ACT}
    s_mul_i32 s{sAT}, s{sCNT}, {FR}
    s_mul_i32 s{sT2}, s{sJ}, {28*1024}
    s_add_u32 s{sAT}, s{sAT}, s{sT2}
    s_add_u32 s{sAT}, s{sAT}, {WS_ACT}
    s_add_u32 s{sCNT}, s{sCNT}, s{sT}
    s_lshl_b32 s{sHH}, s{sCNT}, 15
    s_and_b32 s{sT}, s{sMEM}, 7
    s_lshl_b32 s{sT}, s{sT}, 1
    s_and_b32 s{sT2}, s{sJ}, 1
    s_add_u32 s{sT}, s{sT}, s{sT2}
    s_lshl_b32 s26, s{sT}, 6
    s_add_u32 s26, s26, s{sHH}
    s_lshl_b32 s{sT}, s{sT}, 11
    s_add_u32 s{sHH}, s{sHH}, s{sT}
    s_add_u32 s{sHH}, s{sHH}, {WS_H}
    s_lshl_b32 s{sT}, s{sJ}, 2
    s_lshl_b32 s{sMK}, 0xf000f, s{sT}
    v_and_b32 v{vPA4}, 15, v{vL}
    v_lshlrev_b32 v{vPA4}, 2, v{vPA4}
    v_bfe_u32 v16, v{vL}, 4, 1
    v_lshl_add_u32 v{vPA4}, v16, 8, v{vPA4}
    v_and_b32 v16, 31, v{vL}
    v_lshlrev_b32 v16, 4, v16
    v_lshrrev_b32 v17, 5, v{vL}
    v_lshl_add_u32 v16, v17, 10, v16
    v_mov_b32 v{vPL4}, 0
    s_waitcnt vmcnt(16)
    s_barrier
    s_waitcnt vmcnt(0)
    s_barrier
    """)
    stamp(9)
    a("s_setprio 0")
    poll("act0", vPL4, vPA4, sFA, 2, None)
    stamp(10)
    vm, lg = VM(), VM()
    blk = {("w", u): vWD + 8*u for u in range(14)}
    free = [vAT + 8*i for i in range(8)]
    for u in range(14): vm.pos[("w", u)] = 0
    for h in range(2):
        a(f"buffer_load_dwordx4 {vr(vHh+4*h,4)}, v16, {ws()}, s{sHH} offen offset:{512*h} sc1")
        vm.issue("h")
    def g_load(kind, u):
        r = blk[(kind, u)] = free.pop(0)
        a(f"s_add_u32 s{sT}, s{sAT if kind == 'a' else sWD}, {koff(u)}")
        for n in range(2):
            va = (vA0_, vA1_)[n] if kind == "a" else (vW0, vW1)[n]
            a(f"buffer_load_dwordx4 {vr(r+4*n,4)}, v{va}, {ws()}, s{sT} offen sc1")
            vm.issue((kind, u))
    for u in range(8): g_load("a", u)
    LW0, LW1 = 14, 22
    a(f"s_lshl_b32 s{sT2}, s{sJ}, 14\ns_add_u32 s{sT2}, s{sT2}, 0x8000")
    for u in range(LW0, LW1):
        for n in range(2):
            a(f"s_add_u32 m0, s{sT2}, {(u-LW0)*2048 + n*1024}")
            a(f"s_add_u32 s{sT}, s{sWD}, {koff(u)}" if n == 0 else "s_nop 0")
            a(f"buffer_load_dwordx4 v{(vW0, vW1)[n]}, {ws()}, s{sT} offen sc1 lds"); vm.issue(("l", u))
    def poll_issue():
        a(f"buffer_load_dword v{vPL4}, v{vPA4}, {ws()}, s{sFA} offen sc1"); vm.issue("p")
    poll_issue()
    a(f"s_waitcnt vmcnt({vm.cnt('h')})")
    for i in range(8):
        a(f"v_lshlrev_b32 v{vAC4+2*i}, 16, v{vHh+i}\nv_and_b32 v{vAC4+2*i+1}, 0xffff0000, v{vHh+i}")
    vLWD = 8
    a(f"v_add_u32 v{vLWD}, s{sT2}, v{vL16}")
    GATE = opt.get("gate", {0: 3, 2: 4, 5: 5, 9: 6, 15: 7})
    PI = opt.get("pi", (1, 3, 6, 12))
    queue = sorted([("a", u) for u in range(8, 28)] + [("w", u) for u in range(LW1, 28)], key=lambda k: (k[1], k[0]))
    avail = 2
    for u in range(28):
        w = f"vmcnt({min(63, vm.cnt(('a', u)), *([] if LW0 <= u < LW1 else [vm.cnt(('w', u))]))})"
        if LW0 <= u < LW1: w += f" lgkmcnt({lg.cnt(u)})"
        a("s_waitcnt " + w)
        for k in (1, 2, 3, 0):
            A = vAC4 + 16*k
            mf32(A, blk[("w", u)] + 4*(k & 1), blk[("a", u)] + 4*(k >> 1), "0" if (u == 0 and k) else A)
        free += [blk[("w", u)], blk[("a", u)]]
        if LW0 <= u + 2 < LW1:
            r = blk[("w", u+2)] = free.pop(0)
            if u + 2 == LW0: a(f"s_waitcnt vmcnt({min(63, vm.cnt(('l', LW1-1)))})")
            for n in range(2):
                a(f"ds_read_b128 {vr(r+4*n,4)}, v{vLWD} offset:{(u+2-LW0)*2048 + n*1024}"); lg.issue(u + 2)
        if u in GATE:
            avail = GATE[u]
            if avail == 7: a("s_barrier")
            a(f"s_waitcnt vmcnt({vm.cnt('p')})")
            poll(f"act{avail}", vPL4, vPA4, sFA, avail, sMK)
            if avail == 7: stamp(11)
        if u in PI: poll_issue()
        for key in list(queue):
            if not free: break
            if key[0] == "a" and key[1] >= 4*avail: continue
            g_load(*key); queue.remove(key)
    assert not queue
    stamp(12)
    for k in range(1, 4):
        a(f"s_xor_b32 s{sT}, s{sJ}, {k}\ns_mul_i32 s{sT}, s{sT}, {3*4096}\ns_add_u32 s{sT}, s{sT}, {L_RED + (k-1)*4096}")
        a(f"v_add_u32 v{4+k}, s{sT}, v{vL16}")
    a(f"s_mul_i32 s{sT}, s{sJ}, {3*4096}\ns_add_u32 s{sT}, s{sT}, {L_RED}\nv_add_u32 v4, s{sT}, v{vL16}")
    for k in range(1, 4):
        for q in range(4):
            a(f"ds_write_b128 v{4+k}, {vr(vAC4+16*k+4*q,4)} offset:{q*1024}")
    srd(a, OUT, 22, 2048*1024)
    a(f"""
    v_and_b32 v8, 31, v{vL}
    v_lshlrev_b32 v8, 10, v8
    v_lshrrev_b32 v9, 5, v{vL}
    v_lshl_add_u32 v8, v9, 5, v8
    s_waitcnt lgkmcnt(0)
    s_barrier
    """)
    stamp(13)
    for q in range(4):
        for k in range(3):
            a(f"ds_read_b128 {vr(32+16*k+4*q,4)}, v4 offset:{k*4096 + q*1024}")
    for q in range(4):
        a(f"s_waitcnt lgkmcnt({9-3*q})")
        for r in range(4*q, 4*q + 4):
            a(f"v_add_f32 v{vAC4+r}, v{vAC4+r}, v{32+r}\nv_add_f32 v{48+r}, v{48+r}, v{64+r}")
        for r in range(4*q, 4*q + 4): a(f"v_add_f32 v{vAC4+r}, v{vAC4+r}, v{48+r}")
        for r in range(2*q, 2*q + 2): a(f"v_cvt_pk_bf16_f32 v{80+r}, v{vAC4+2*r}, v{vAC4+2*r+1}")
        if q & 1:
            a(f"buffer_store_dwordx4 {vr(80+4*(q>>1),4)}, v8, s[{OUT}:{OUT+3}], s26 offen offset:{16*(q>>1)}" + (" sc1" if opt.get("outsc1") else ""))
    a("s_branch kb_done")
    slow_path("b")

    a.label("kb_done")
    if opt.get("stamp"):
        a("s_waitcnt vmcnt(0)")
        stamp(14)
        a(f"""
        s_lshl_b32 s{sT}, s2, 3
        s_add_u32 s{sT}, s{sT}, s{sW}
        s_lshl_b32 s{sT}, s{sT}, 6
        s_add_u32 s{sT}, s{sT}, {WS_DBG + 0x10000}
        v_mov_b32 v1, 0
        """)
        for i in range(16): a(f"v_mov_b32 v{4+i}, s{64+2*min(i,14)}")
        for i in range(4): a(f"buffer_store_dwordx4 {vr(4+4*i,4)}, v1, {ws()}, s{sT} offen offset:{16*i}")
    a.label("kb_exit")
    a("s_endpgm")
```

```python
NAME = "sequential_preLN__grouped_kv_mqa__glu_gated_glu__prompt"
WS_Q    = 0x0000000
WS_KV   = 0x0200000
WS_FLAG = 0x0240000
FL_RL, FL_HN, FL_ACT, FL_XID = 0x0, 0x4000, 0x8000, 0xC000
WS_WO   = 0x0280000
WS_WD   = 0x0300000
WS_WGU  = 0x0500000
WS_HN   = 0x0900000
WS_H    = 0x0B00000
WS_ACT  = 0x0D00000
WS_DBG  = 0x1400000
WS_SIZE = 0x1500000
KVT = 2112
VH = 544
ONES = 0x3F803F80
LOG2E = 1.4426950408889634
import struct
def f32(x):
    return "0x%08x" % struct.unpack("<I", struct.pack("<f", x))[0]
```

```python
import sys, os
sys.path.insert(0, os.path.dirname(os.path.abspath(__file__)))
from asmlib import *
from layout import *
import ka

def kd(name, vgpr, sgpr=102):
    return f""".p2align 6
.amdhsa_kernel {name}
  .amdhsa_next_free_vgpr {vgpr}
  .amdhsa_next_free_sgpr {sgpr}
  .amdhsa_accum_offset {(vgpr+3)//4*4}
  .amdhsa_group_segment_fixed_size 0
  .amdhsa_kernarg_size 96
  .amdhsa_user_sgpr_count 2
  .amdhsa_user_sgpr_kernarg_segment_ptr 1
  .amdhsa_system_sgpr_workgroup_id_x 1
.end_amdhsa_kernel
"""

def build(opt):
    ref = open(f"cdna_kernels/{NAME}.s.ref").read().split("\n")
    head = [l for l in ref if l.startswith(";") and "@launch" not in l and "Override" not in l and "grid=ceil" not in l]
    kernels = [("qkv_kernel", ka.gen_ka, ka.KA_LDS, 128)]
    if not opt.get("only_a"):
        import kb
        kernels.append((NAME + "_kernel", kb.gen_kb, kb.KB_LDS, 256))
    out = "\n".join(head) + "\n"
    for n, _, lds, _ in kernels:
        out += f"; @launch kernel={n} grid=(256,1,1) block=(512,1,1) lds={lds}\n"
    out += '.amdgcn_target "amdgcn-amd-amdhsa--gfx950"\n.text\n'
    nerr = 0
    for n, g, _, _ in kernels:
        a = Asm()
        g(a, n, opt)
        errs = check_hazards(a.text())
        for e in errs[:40]: print(e)
        nerr += len(errs)
        out += f".globl {n}\n.p2align 8\n.type {n},@function\n" + a.text()
    out += '.section .rodata,"a"\n'
    for n, _, _, v in kernels: out += kd(n, v)
    assert nerr == 0, f"{nerr} hazards"
    return out

if __name__ == "__main__":
    opt = {}
    path = f"cdna_kernels/{NAME}.s"
    for x in sys.argv[1:]:
        if x.endswith(".s"): path = x
        elif "=" in x:
            k, v = x.split("="); opt[k] = int(v)
        else: opt[x] = 1
    open(path, "w").write(build(opt))
    print("wrote", path)
```

```python
from asmlib import *
from layout import *
from ka import srd

KB_LDS = 163840
L_STG = 135168
L_OXH = L_STG
L_OXL = 159744
L_LNS = 162816
L_RED = 98304
FR = 114688
SPIN = 1 << 15

STAMPS = {"w0-3": ["start", "B1", "attn", "B4", "st1", "B5", "st2", "B6", "stored", "acked", "BA", "seen", "BB", "T0", "end"],
          "w4-7": ["start", "B1", "B3", "rl", "rlseen", "B4", "attn", "B6", "BA", "BC", "seen0", "seen6", "mm", "red", "end"]}

WS, X, OUT, RA, RB, RD = 28, 32, 36, 40, 44, 48
sW, sJ, sGRP, sMEM, sT, sT2, sT3, sO, sO2, sCNT, sMK, sMODE = 52, 53, 54, 55, 56, 57, 58, 59, 60, 61, 62, 98
vL, vL16, vT, vT2 = 1, 2, 3, 0

vQ, vK, vV, vP, vKA, vVA, vOXW, vIX, vS, vO, vC = 4, 8, 16, 32, 40, 43, 46, 47, 48, 80, 96

class VM:
    def __init__(self): self.n = 0; self.pos = {}
    def issue(self, key=None):
        self.n += 1
        if key is not None: self.pos[key] = self.n
    def cnt(self, key): return self.n - self.pos[key]

def ws(): return f"s[{WS}:{WS+3}]"

def gen_kb(a, name, opt):
    def stamp(i, wait=True, inner=False):
        if opt.get("astamp") and 7 <= i <= 13 and not inner: return
        if opt.get("pstamp") and 1 <= i <= 8 and not inner: return
        if opt.get("stamp"):
            a(f"{'s_memtime' if opt.get('cyc') else 's_memrealtime'} s[{64+2*i}:{65+2*i}]")
            if wait: a("s_waitcnt lgkmcnt(0)")
    def mf32(d, x, y, c): a(f"v_mfma_f32_32x32x16_bf16 {vr(d,16)}, {vr(x,4)}, {vr(y,4)}, {c if isinstance(c,str) else vr(c,16)}")

    def sm32(x, y): a(f"v_smfmac_f32_32x32x32_bf16 {vr(vO,16)}, {vr(x,4)}, {vr(y,8)}, v{vIX}")
    def attention(tag, hooks, extras):
        lg = VM()
        def rd_k(t):
            if t >= 64: return
            b, o = divmod(t, 30)
            a(f"ds_read_b128 {vr(vK+4*(t&1),4)}, v{vKA+b} offset:{o*KVT}"); lg.issue(("k", t))
        def rd_v(t, u):
            if t >= 64: return
            b, o = divmod(t, 30)
            a(f"ds_read_b128 {vr(vV+8*(t&1)+4*u,4)}, v{vVA+b} offset:{o*KVT+u*VH}"); lg.issue(("v", t, u))
        rd_k(0); rd_k(1); rd_v(0, 0); rd_v(0, 1); rd_v(1, 0)
        a(f"s_waitcnt lgkmcnt({lg.cnt(('k', 0))})")
        mf32(vS, vK, vQ, "0")
        rd_k(2)
        a("s_nop 10")
        for t in range(64):
            S, N = vS + 16*(t & 1), vS + 16*((t+1) & 1)
            ex = list(extras.get(t, []))
            def e(*idx):
                for i in idx: a(f"v_exp_f32 v{S+i}, v{S+i}")
            def extra():
                if ex: ex.pop(0)()
            if opt.get("astamp") and t and t % 8 == 0: stamp(6 + t//8, wait=False, inner=True)
            if t in hooks: hooks[t]()
            e(0, 1)
            need = [("v", t, 0)] + ([("v", t-1, 1)] if t else []) + ([("k", t+1)] if t < 63 else [])
            a(f"s_waitcnt lgkmcnt({min(lg.cnt(k) for k in need)})")
            if t > 0: sm32(vV + 8*((t-1) & 1) + 4, N + 8)
            rd_v(t + 1, 1); extra()
            e(2, 3, 4)
            if t < 63: mf32(N, vK + 4*((t+1) & 1), vQ, "0")
            rd_k(t + 3); extra()
            e(5, 6, 7, 8, 9)
            sm32(vV + 8*(t & 1), S)
            rd_v(t + 2, 0); extra()
            e(10, 11, 12, 13, 14, 15)
            assert not ex
        a("s_waitcnt lgkmcnt(0)\ns_nop 0")
        sm32(vV + 8 + 4, vS + 16 + 8)
        a(f"""
        s_mov_b32 s{sT}, {f32(2.0**-64)}
        s_mov_b32 s{sT2}, {f32(2.0**64)}
        s_nop 11
        v_cmp_lt_f32 vcc, s{sT}, v{vO+8}
        v_cmp_gt_f32 s[96:97], s{sT2}, v{vO+8}
        v_rcp_f32 v{vT}, v{vO+8}
        s_and_b64 vcc, vcc, s[96:97]
        s_cmp_eq_u64 vcc, -1
        s_cbranch_scc0 slow_{tag}
        """)
        a.label(f"norm_{tag}")
        for r in range(8): a(f"v_mul_f32 v{vO+r}, v{vO+r}, v{vT}")
        for r in range(4): a(f"v_cvt_pk_bf16_f32 v{vP+r}, v{vO+2*r}, v{vO+2*r+1}")
        a(f"ds_write_b128 v{vOXW}, {vr(vP,4)}\ns_waitcnt lgkmcnt(0)")

    def slow_path(tag):
        a.label(f"slow_{tag}")
        vM = vC
        a(f"v_mov_b32 v{vM}, 0xff800000\ns_mov_b32 s{sT}, {WS_KV}")
        a.label(f"slow1_{tag}")
        a(f"buffer_load_dwordx4 {vr(vK,4)}, v{vKA}, {ws()}, s{sT} offen\ns_waitcnt vmcnt(0)")
        mf32(vS, vK, vQ, "0")
        a(f"s_add_u32 s{sT}, s{sT}, {KVT}\ns_nop 11")
        for r in range(8): a(f"v_max3_f32 v{vM}, v{vM}, v{vS+2*r}, v{vS+2*r+1}")
        a(f"""
        s_cmp_lg_u32 s{sT}, {WS_KV + 64*KVT}
        s_cbranch_scc1 slow1_{tag}
        v_mov_b32 v{vM+1}, v{vM}
        s_nop 1
        v_permlane32_swap_b32 v{vM}, v{vM+1}
        v_max_f32 v{vM}, v{vM}, v{vM+1}
        v_sub_f32 v{vM}, 0, v{vM}
        """)
        for r in range(1, 16): a(f"v_mov_b32 v{vM+r}, v{vM}")
        for r in range(16): a(f"v_mov_b32 v{vO+r}, 0")
        a(f"s_mov_b32 s{sT}, {WS_KV}")
        a.label(f"slow2_{tag}")
        a(f"""
        buffer_load_dwordx4 {vr(vK,4)}, v{vKA}, {ws()}, s{sT} offen
        buffer_load_dwordx4 {vr(vV,4)}, v{vVA}, {ws()}, s{sT} offen
        buffer_load_dwordx4 {vr(vV+4,4)}, v{vVA}, {ws()}, s{sT} offen offset:{VH}
        s_waitcnt vmcnt(0)
        """)
        mf32(vS, vK, vQ, vM)
        a(f"s_add_u32 s{sT}, s{sT}, {KVT}\ns_nop 11")
        for r in range(16): a(f"v_exp_f32 v{vS+r}, v{vS+r}")
        a("s_nop 1")
        sm32(vV, vS)
        sm32(vV + 4, vS + 8)
        a(f"""
        s_nop 15
        s_cmp_lg_u32 s{sT}, {WS_KV + 64*KVT}
        s_cbranch_scc1 slow2_{tag}
        v_rcp_f32 v{vT}, v{vO+8}
        s_branch norm_{tag}
        """)

    def poll(tag, vdst, vaddr, soff, need, mask, sleep=0):
        a(f"s_mov_b32 s{sCNT}, {SPIN}")
        a.label(f"poll_{tag}")
        a(f"v_cmp_le_u32 vcc, {need}, v{vdst}\ns_sub_u32 s{sCNT}, s{sCNT}, 1\ns_cbranch_scc1 done_{tag}")
        if mask is None:
            a("s_cmp_eq_u64 vcc, -1")
        else:
            a(f"s_and_b32 s{sT}, vcc_lo, s{mask}\ns_cmp_eq_u32 s{sT}, s{mask}")
        a(f"s_cbranch_scc1 done_{tag}")
        if sleep: a(f"s_sleep {sleep}")
        a(f"buffer_load_dword v{vdst}, v{vaddr}, {ws()}, s{soff} offen sc1\ns_waitcnt vmcnt(0)")
        a(f"s_branch poll_{tag}")
        a.label(f"done_{tag}")

    a.label(name)
    a(f"""
    s_cmp_ge_u32 s2, 256
    s_cbranch_scc1 kb_exit
    s_load_dwordx2 s[24:25], s[0:1], 88
    s_load_dwordx16 s[4:19], s[0:1], 0
    s_load_dwordx4 s[20:23], s[0:1], 64
    """)
    stamp(0, wait=False)
    a(f"""
    v_lshrrev_b32 v{vT}, 6, v0
    v_and_b32 v{vL}, 63, v0
    s_lshr_b32 s{sT}, s2, 3
    v_readfirstlane_b32 s{sW}, v{vT}
    s_and_b32 s{sMEM}, s{sT}, 15
    s_lshr_b32 s{sT}, s{sT}, 4
    s_and_b32 s{sGRP}, s2, 7
    s_lshl_b32 s{sGRP}, s{sGRP}, 1
    s_add_u32 s{sGRP}, s{sGRP}, s{sT}
    v_lshlrev_b32 v{vL16}, 4, v{vL}
    s_and_b32 s{sJ}, s{sW}, 3
    s_lshl_b32 s{sT}, s{sGRP}, 4
    s_add_u32 s{sT}, s{sT}, s{sMEM}
    s_lshl_b32 s{sT}, s{sT}, 3
    s_add_u32 s{sT}, s{sT}, s{sW}
    s_lshl_b32 s{sT}, s{sT}, 10
    s_lshl_b32 s{sO}, s{sJ}, 10
    s_waitcnt lgkmcnt(0)
    """)
    srd(a, WS, 24, WS_SIZE)
    a(f"""
    buffer_load_dwordx4 {vr(vQ,4)}, v{vL16}, {ws()}, s{sT} offen
    s_cmp_ge_u32 s{sW}, 4
    s_cbranch_scc1 kb_grpb
    """)
    def attn_addrs(oxbase):
        a(f"""
        v_mov_b32 v{vKA}, v{vL16}
        v_add_u32 v{vKA+1}, {30*KVT}, v{vL16}
        v_add_u32 v{vKA+2}, {60*KVT}, v{vL16}
        v_lshrrev_b32 v{vT}, 5, v{vL}
        v_and_b32 v{vVA}, 15, v{vL}
        v_lshlrev_b32 v{vVA}, 4, v{vVA}
        v_lshl_add_u32 v{vVA}, v{vT}, 8, v{vVA}
        s_mov_b32 exec_lo, 0xffff0000
        s_mov_b32 exec_hi, 0xffff0000
        v_mov_b32 v{vVA}, 0x210
        s_mov_b32 exec_lo, 0x00110000
        s_mov_b32 exec_hi, 0x00110000
        v_mov_b32 v{vVA}, 0x200
        s_mov_b64 exec, -1
        v_mov_b32 v{vIX}, 0xdddddddd
        v_add_u32 v{vVA}, 0x400, v{vVA}
        v_add_u32 v{vVA+1}, {30*KVT}, v{vVA}
        v_add_u32 v{vVA+2}, {60*KVT}, v{vVA}
        s_lshl_b32 s{sT}, s{sJ}, 10
        s_add_u32 s{sT}, s{sT}, {oxbase}
        v_lshl_add_u32 v{vOXW}, v{vT}, 7, s{sT}
        v_bfe_u32 v{vT}, v{vL}, 3, 2
        v_lshl_add_u32 v{vOXW}, v{vT}, 8, v{vOXW}
        v_and_b32 v{vT}, 7, v{vL}
        v_lshl_add_u32 v{vOXW}, v{vT}, 4, v{vOXW}
        """)
        for r in range(16): a(f"v_mov_b32 v{vO+r}, 0")
    R1, R2 = opt.get("r1", 3), opt.get("r2", 10)
    def first_tile_needing(nbytes):
        for t in range(64):
            if (t + 3)*KVT + 1024 > nbytes: return t
    R3 = 22
    TB2, TB3, TB4 = first_tile_needing(R1*4096), first_tile_needing(R2*4096), first_tile_needing(R3*4096)

    a(f"s_setprio 2\ns_lshl_b32 s{sO}, s{sJ}, 17\ns_add_u32 s{sO}, s{sO}, {WS_WO}")
    attn_addrs(L_OXL)
    a("s_waitcnt vmcnt(0)\ns_barrier")
    stamp(1)
    vAc, vB, vOXR, vHO, vLW, vLR, vFO, vWR = 8, 40, 52, 53, 54, 55, 56, 59
    wreg = lambda f: 64 + 4*((f + 12) % 48)
    vm = VM()
    def wo_load(f):
        if f and f % 4 == 0: a(f"s_add_u32 s{sO}, s{sO}, 0x1000")
        a(f"buffer_load_dwordx4 {vr(wreg(f),4)}, v{vL16}, {ws()}, s{sO} offen offset:{(f%4)*1024}"); vm.issue(f)
    TRY = opt.get("try", 22)
    bar = lambda: a("s_barrier")
    extras = {TRY + i: [lambda f=2*i: wo_load(f), lambda f=2*i+1: wo_load(f)] for i in range(18)}
    attention("a", {TB2: bar, TB3: bar, TB4: bar}, extras)
    stamp(2)
    a(f"s_setprio {opt.get('hprio', 2)}\ns_barrier")
    stamp(3)
    srd(a, X, 4, 2048*1024)
    a(f"""
    v_and_b32 v{vT}, 7, v{vL}
    v_lshrrev_b32 v{vT2}, 4, v{vL}
    v_lshlrev_b32 v60, 10, v{vT}
    v_lshl_add_u32 v60, v{vT2}, 6, v60
    s_lshl_b32 s{sT}, s{sGRP}, 4
    s_add_u32 s{sT}, s{sT}, s{sMEM}
    s_lshl_b32 s{sT}, s{sT}, 13
    s_lshl_b32 s{sT2}, s{sJ}, 8
    s_add_u32 s{sT}, s{sT}, s{sT2}
    """)
    vX = wreg(44)
    for i in range(4): a(f"buffer_load_dwordx4 {vr(vX+4*i,4)}, v60, s[{X}:{X+3}], s{sT} offen offset:{16*i}")
    a(f"""
    v_and_b32 v61, 15, v{vL}
    v_lshlrev_b32 v61, 2, v61
    s_lshl_b32 s{sT}, s{sGRP}, 7
    s_add_u32 s{sT}, s{sT}, {WS_FLAG + FL_XID}
    buffer_load_dword v62, v61, {ws()}, s{sT} offen sc1
    """)
    for f in range(36, 44): wo_load(f)
    a(f"""
    v_lshlrev_b32 v{vLR}, 4, v{vT}
    v_lshl_add_u32 v{vOXR}, v{vT2}, 7, v{vLR}
    v_add_u32 v{vOXR}, {L_OXH}, v{vOXR}
    v_lshrrev_b32 v{vT2}, 3, v{vL}
    v_lshl_add_u32 v{vHO}, v{vT2}, 10, v{vLR}
    v_add_u32 v{vLR}, {L_LNS}, v{vLR}
    v_lshrrev_b32 v{vT2}, 5, v{vL}
    v_lshl_add_u32 v{vLW}, v{vT2}, 7, v{vLR}
    s_lshl_b32 s{sT}, s{sJ}, 2
    v_add_u32 v{vLW}, s{sT}, v{vLW}
    s_lshl_b32 s{sCNT}, s{sJ}, 14
    s_add_u32 s{sCNT}, s{sCNT}, 0x8000
    v_add_u32 v{vWR}, s{sCNT}, v{vL16}
    s_getreg_b32 s{sT}, hwreg(HW_REG_XCC_ID, 0, 4)
    s_add_u32 s{sT}, s{sT}, 1
    s_waitcnt vmcnt(8)
    v_cmp_eq_u32 vcc, s{sT}, v62
    v_mov_b32 v{vFO}, 0x40000000
    v_mov_b32 v{vFO+1}, 0x40000000
    s_cmp_eq_u64 vcc, -1
    s_cselect_b32 s{sMODE}, {0 if opt.get("slowmode") else 1}, 0
    s_cmp_eq_u32 s{sMODE}, 1
    s_cselect_b32 s{sT}, 0, 0x40000000
    s_cselect_b32 s{sT2}, 0x40000000, 0
    v_writelane_b32 v{vFO}, s{sT}, 0
    v_writelane_b32 v{vFO+1}, s{sT2}, 0
    """)
    for i in range(16):
        a(f"v_lshlrev_b32 v{vAc+2*i}, 16, v{vX+i}\nv_and_b32 v{vAc+2*i+1}, 0xffff0000, v{vX+i}")
    for f in range(44, 48): wo_load(f)
    a(f"""
    s_mul_i32 s{sMK}, s{sMEM}, {7*32768}
    s_and_b32 s{sT2}, s{sGRP}, 1
    s_lshl_b32 s{sT2}, s{sT2}, 2
    s_add_u32 s{sT2}, s{sT2}, s{sJ}
    s_mul_i32 s{sT2}, s{sT2}, {24*1024}
    s_add_u32 s{sMK}, s{sMK}, s{sT2}
    s_add_u32 s{sMK}, s{sMK}, {WS_WGU + 32768}
    v_mov_b32 v63, 0x40000000
    s_mov_b64 exec, 0xffff
    v_lshlrev_b32 v63, 7, v{vL}
    s_mov_b64 exec, -1
    """)
    def oproj(k0):
        lg = VM()
        def ox_read(ks):
            off = (L_OXL - L_OXH) + ks*512 if ks < 8 else (ks - 8)*512
            a(f"ds_read_b128 {vr(vB+4*(ks%3),4)}, v{vOXR} offset:{off}"); lg.issue(("o", ks))
        ox_read(k0); ox_read(k0 + 1)
        for ks in range(k0, k0 + 8):
            a(f"s_waitcnt lgkmcnt({lg.cnt(('o', ks))})" + (f" vmcnt({vm.cnt(8*ks+7)})" if ks < 8 else ""))
            for jt in range(8):
                f = 8*ks + jt
                a(f"v_mfma_f32_16x16x32_bf16 {vr(vAc+4*jt,4)}, {vr(wreg(f),4)}, {vr(vB+4*(ks%3),4)}, {vr(vAc+4*jt,4)}")
                if jt == 0 and ks + 2 < k0 + 8: ox_read(ks + 2)
                if f + 48 < 112:
                    wo_load(f + 48)
                    if f % 5 == 2 and f//5 < 12:
                        a(f"buffer_load_dword v62, v63, {ws()}, s{sMK} offen offset:{(f//5 & 1)*2048} sc1"); vm.issue()
                        if f//5 & 1: a(f"s_add_u32 s{sMK}, s{sMK}, 0x1000")
                elif 72 <= f < 104 and f & 1:
                    g = 112 + (f - 72)//2
                    a(f"ds_read_b128 {vr(wreg(g),4)}, v{vWR} offset:{(g-112)*1024}"); lg.issue()
    oproj(0)
    stamp(4)
    slot = [0, 3, 1, 2, 4, 0, 3]
    sG = 63
    def gu_base():
        a(f"""
        s_mul_i32 s{sG}, s{sMEM}, {7*32768}
        s_lshl_b32 s{sT3}, s{sJ}, 13
        s_add_u32 s{sG}, s{sG}, s{sT3}
        s_add_u32 s{sG}, s{sG}, {WS_WGU}
        """)
    def gu_dma(t):
        for i in range(8):
            if i % 4 == 0:
                a(f"s_add_u32 m0, s{sT3}, {slot[t]*32768 + (i//4)*4096}\ns_add_u32 s{sT}, s{sG}, {t*32768 + (i//4)*4096}")
            a(f"buffer_load_dwordx4 v{vL16}, {ws()}, s{sT} offen offset:{(i%4)*1024} sc1 lds")
    sHN, sFL = sO2, 27
    a(f"""
    s_lshl_b32 s{sT}, s{sGRP}, 2
    s_lshr_b32 s{sT2}, s{sMEM}, 2
    s_add_u32 s{sT}, s{sT}, s{sT2}
    s_lshl_b32 s{sFL}, s{sT}, 8
    s_lshl_b32 s{sHN}, s{sT}, 15
    s_lshl_b32 s{sT}, s{sJ}, 13
    s_add_u32 s{sHN}, s{sHN}, s{sT}
    s_and_b32 s{sT2}, s{sMEM}, 3
    s_lshl_b32 s{sT}, s{sT2}, 7
    s_add_u32 s{sHN}, s{sHN}, s{sT}
    s_add_u32 s{sHN}, s{sHN}, {WS_HN}
    s_lshl_b32 s{sT2}, s{sT2}, 2
    s_add_u32 s{sT2}, s{sT2}, s{sJ}
    s_lshl_b32 s{sT2}, s{sT2}, 2
    s_add_u32 s{sFL}, s{sFL}, s{sT2}
    s_add_u32 s{sFL}, s{sFL}, {WS_FLAG + FL_HN}
    s_add_u32 s{sT}, s{sFL}, {FL_ACT - FL_HN}
    buffer_load_dword v62, v{vHO}, {ws()}, s{sHN} offen sc1
    buffer_load_dword v62, v{vHO}, {ws()}, s{sHN} offen offset:512 sc1
    buffer_load_dword v62, v{vFO}, {ws()}, s{sFL} offen sc1
    buffer_load_dword v62, v{vFO}, {ws()}, s{sT} offen sc1
    """)
    AL2 = opt.get("actl2", 2)
    if AL2:
        a(f"""
        s_lshl_b32 s{sT}, s{sGRP}, 2
        s_add_u32 s{sT}, s{sT}, s{sJ}
        s_mul_i32 s{sT}, s{sT}, {FR}
        s_mul_i32 s{sT2}, s{sMEM}, {7*1024}
        s_add_u32 s{sT}, s{sT}, s{sT2}
        s_add_u32 s{sT}, s{sT}, {WS_ACT + (7 - AL2)*1024}
        v_lshlrev_b32 v63, 7, v{vL}
        s_mov_b32 exec_lo, {((1 << 8*AL2) - 1) & 0xffffffff:#x}
        s_mov_b32 exec_hi, {((1 << 8*AL2) - 1) >> 32:#x}
        buffer_load_dword v62, v63, {ws()}, s{sT} offen sc1
        s_mov_b64 exec, -1
        """)
    gu_base()
    a("s_barrier")
    for i in range(16):
        if i % 4 == 0: a(f"s_add_u32 m0, s{sCNT}, {i*1024}\ns_add_u32 s{sO}, s{sO}, 0x1000")
        a(f"buffer_load_dwordx4 v{vL16}, {ws()}, s{sO} offen offset:{(i%4)*1024} lds")
    gu_dma(0)
    a("s_waitcnt vmcnt(0)\ns_setprio 3\ns_barrier")
    stamp(5)
    oproj(8)
    stamp(6)
    a("s_nop 2\ns_mov_b32 exec_lo, 0xff00ff00\ns_mov_b32 exec_hi, 0xff00ff00")
    for i in range(16): a(f"v_mov_b32 v{vAc+i}, v{vAc+16+i}")
    a("s_mov_b64 exec, -1")
    s0, s1, q0, q1, vH, vN = 64, 65, 66, 67, 120, 80
    a(f"v_add_f32 v{s0}, v{vAc}, v{vAc+2}\nv_add_f32 v{s1}, v{vAc+1}, v{vAc+3}")
    a(f"v_mul_f32 v{q0}, v{vAc}, v{vAc}\nv_mul_f32 v{q1}, v{vAc+1}, v{vAc+1}")
    for i in range(2, 16):
        if i >= 4: a(f"v_add_f32 v{s0+(i&1)}, v{s0+(i&1)}, v{vAc+i}")
        a(f"v_fmac_f32 v{q0+(i&1)}, v{vAc+i}, v{vAc+i}")
    a(f"""
    v_add_f32 v{s0}, v{s0}, v{s1}
    v_add_f32 v{q0}, v{q0}, v{q1}
    v_cvt_pk_bf16_f32 v{vH}, v{vAc}, v{vAc+1}
    v_cvt_pk_bf16_f32 v{vH+1}, v{vAc+2}, v{vAc+3}
    v_permlane32_swap_b32 v{s0}, v{q0}
    v_add_f32 v{s0}, v{s0}, v{q0}
    v_cvt_pk_bf16_f32 v{vH+2}, v{vAc+4}, v{vAc+5}
    v_cvt_pk_bf16_f32 v{vH+3}, v{vAc+6}, v{vAc+7}
    v_add_f32_dpp v{s0}, v{s0}, v{s0} row_ror:8 row_mask:0xf bank_mask:0xf
    v_mov_b32 v{s1}, v{s0}
    v_cvt_pk_bf16_f32 v{vH+4}, v{vAc+8}, v{vAc+9}
    v_cvt_pk_bf16_f32 v{vH+5}, v{vAc+10}, v{vAc+11}
    v_permlane16_swap_b32 v{s0}, v{s1}
    v_add_f32 v{s0}, v{s0}, v{s1}
    ds_write_b32 v{vLW}, v{s0}
    v_cvt_pk_bf16_f32 v{vH+6}, v{vAc+12}, v{vAc+13}
    v_cvt_pk_bf16_f32 v{vH+7}, v{vAc+14}, v{vAc+15}
    s_waitcnt lgkmcnt(0)
    s_barrier
    """)
    stamp(7)
    a(f"""
    ds_read_b128 v[64:67], v{vLR}
    ds_read_b128 v[68:71], v{vLR} offset:128
    s_add_u32 s26, s{sHN}, {WS_H - WS_HN}
    v_mov_b32 v58, 1
    s_waitcnt lgkmcnt(0)
    v_add_f32 v64, v64, v65
    v_add_f32 v68, v68, v69
    v_add_f32 v66, v66, v67
    v_add_f32 v70, v70, v71
    v_add_f32 v64, v64, v66
    v_add_f32 v68, v68, v70
    v_mul_f32 v64, {f32(1/512)}, v64
    v_mul_f32 v68, {f32(1/512)}, v68
    v_fma_f32 v68, -v64, v64, v68
    v_max_f32 v68, 0, v68
    v_add_f32 v68, {f32(1e-5)}, v68
    v_rsq_f32 v68, v68
    s_nop 0
    v_mul_f32 v68, {f32(LOG2E)}, v68
    v_mul_f32 v64, v64, v68
    """)
    for i in range(16): a(f"v_fma_f32 v{vAc+i}, v{vAc+i}, v68, -v64")
    a(f"s_cmp_eq_u32 s{sMODE}, 1")
    for i in range(8): a(f"v_cvt_pk_bf16_f32 v{vN+i}, v{vAc+2*i}, v{vAc+2*i+1}")
    a("s_cbranch_scc0 kb_hn_far")
    def hn_store(fl):
        for h in range(2): a(f"buffer_store_dwordx4 {vr(vN+4*h,4)}, v{vHO}, {ws()}, s{sHN} offen offset:{512*h}{fl}")
    hn_store("")
    a.label("kb_hn_back")
    stamp(8)
    vPL, vPA, vA0, vAcc, vAR, vE, vPk, vHN = 4, 5, 6, 16, 64, 96, 112, 128
    sAC, sAF = sO, sMK
    a(f"""
    s_lshl_b32 s{sT}, s{sGRP}, 2
    s_add_u32 s{sT}, s{sT}, s{sJ}
    s_mul_i32 s{sAC}, s{sT}, {FR}
    s_mul_i32 s{sT2}, s{sMEM}, {7*1024}
    s_add_u32 s{sAC}, s{sAC}, s{sT2}
    s_add_u32 s{sAC}, s{sAC}, {WS_ACT}
    s_lshl_b32 s{sG}, s{sT}, 15
    s_add_u32 s{sG}, s{sG}, {WS_HN}
    s_lshl_b32 s{sT}, s{sT}, 8
    s_lshl_b32 s{sT2}, s{sMEM}, 2
    s_add_u32 s{sAF}, s{sT}, s{sT2}
    s_add_u32 s{sAF}, s{sAF}, {WS_FLAG + FL_ACT}
    s_add_u32 s{sT2}, s{sT}, {WS_FLAG + FL_HN}
    v_and_b32 v{vPA}, 15, v{vL}
    v_lshlrev_b32 v{vPA}, 2, v{vPA}
    v_mov_b32 v{vPL}, 0
    v_add_u32 v{vA0+1}, 0x10000, v{vL16}
    v_mov_b32 v9, v{vFO}
    v_mov_b32 v10, v{vFO+1}
    v_mov_b32 v13, v{vHO}
    s_cmp_eq_u32 s{sMODE}, 1
    s_cselect_b32 s{sT}, 0, 0x40000000
    s_cselect_b32 s{sCNT}, 0x40000000, 0
    v_add_u32 v14, s{sT}, v{vL16}
    v_add_u32 v15, s{sCNT}, v{vL16}
    v_add_u32 v{vA0+2}, 0x20000, v{vL16}
    s_waitcnt vmcnt(0)
    """)
    stamp(9)
    vFO2, vFV, vHO2 = 9, 11, 13
    def flag(v, soff):
        return f"buffer_store_dword v{v}, v{vFO2}, {ws()}, s{soff} offen\nbuffer_store_dword v{v}, v{vFO2+1}, {ws()}, s{soff} offen sc1"
    a(flag(58, sFL))
    a("s_barrier")
    stamp(10)
    poll("hn", vPL, vPA, sT2, 1, None)
    stamp(11)
    vm = VM()
    def hn_load(s):
        if s and s % 4 == 0: a(f"s_add_u32 s{sG}, s{sG}, 0x1000")
        a(f"buffer_load_dwordx4 {vr(vHN+4*s,4)}, v{vL16}, {ws()}, s{sG} offen offset:{(s%4)*1024} sc1"); vm.issue(("hn", s))
    HL = opt.get("hl", 14)
    for s in range(HL): hn_load(s)
    seq = [(t, s) for s in range(32) for t in (0, 1)] + [(t, s) for t in range(2, 7) for s in range(32)]
    LA = 7
    def a_read(n):
        t, s = seq[n]
        base = {0: vL16, 1: vA0+1, 2: vA0+2}[slot[t] >> 1]
        a(f"ds_read_b128 {vr(vAR+4*(n%8),4)}, v{base} offset:{(slot[t]&1)*32768 + s*1024}")
    sLG = sT3
    a(f"s_mov_b32 s{sLG}, {f32(LOG2E)}")
    def epilogue(t):
        A, pk = vAcc + 16*(t % 3), vPk + 4*(t & 1)
        ops = []
        for r in range(8): ops.append(f"v_exp_f32 v{vE+r}, -v{A+r}")
        for r in range(8): ops.append(f"v_fma_f32 v{vE+r}, v{vE+r}, s{sLG}, s{sLG}")
        for r in range(8): ops.append(f"v_rcp_f32 v{vE+r}, v{vE+r}")
        for r in range(8): ops.append(f"v_mul_f32 v{vE+r}, v{vE+r}, v{A+8+r}")
        for r in range(4): ops.append(f"v_cvt_pk_bf16_f32 v{pk+r}, v{vE+2*r}, v{vE+2*r+1}")
        return ops
    def act_store(t):
        if t == 4: a(f"s_add_u32 s{sAC}, s{sAC}, 0x1000")
        for va, fl in (((14, ""), (15, " sc1")) if t >= 7 - AL2 else ((vL16, " sc1"),)):
            a(f"buffer_store_dwordx4 {vr(vPk+4*(t&1),4)}, v{va}, {ws()}, s{sAC} offen offset:{(t%4)*1024}{fl}"); vm.issue(("st", t))
    def publish(n):
        a(f"s_waitcnt vmcnt({vm.cnt(('st', n-1))})\n" + flag(vFV + (n & 1), sAF)); vm.issue(); vm.issue()
    cost = lambda op: 8 if op.startswith(("v_exp", "v_rcp")) else 4
    for n in range(LA): a_read(n)
    pend = []
    PUB = {(4, 2): 2, (4, 30): 3, (5, 30): 4, (6, 30): 5} if AL2 < 7 else {(3, 27): 2, (4, 3): 3, (5, 3): 4, (6, 3): 5}
    for n, (t, s) in enumerate(seq):
        if t >= 2 and s == 4:
            for te in ([0, 1] if t == 2 else [t - 1]):
                pend += [("v", o) for o in epilogue(te)] + [("m", te)]
        w = f"lgkmcnt({min(LA - 1, len(seq) - 1 - n)})"
        if n < 64 and t == 0: w += f" vmcnt({vm.cnt(('hn', s))})"
        a("s_waitcnt " + w)
        if opt.get("pstamp") and ((s == 0 and t != 1) or (t, s) in ((0, 8), (0, 16))): stamp(1 + s//8 if t == 0 else t + 2, wait=False, inner=True)
        A = vAcc + 16*(t % 3)
        mf32(A, vAR + 4*(n % 8), vHN + 4*s, "0" if s == 0 else A)
        if n + LA < len(seq):
            if seq[n + LA] == (4, 0): a(f"s_waitcnt vmcnt({vm.cnt('h')})")
            if seq[n + LA] in ((4, 0), (5, 0)): a("s_barrier")
            a_read(n + LA)
        if t == 0 and s + HL < 32: hn_load(s + HL)
        if t == 1 and s in (20, 21):
            a(f"buffer_store_dwordx4 {vr(vH+4*(s-20),4)}, v{vHO2}, {ws()}, s26 offen offset:{512*(s-20)} sc1"); vm.issue("h")
        if (t, s) == (1, 31):
            a("s_barrier"); stamp(12, wait=False)
        if (t, s + 1) in PUB: a(f"v_mov_b32 v{vFV + (PUB[(t, s+1)] & 1)}, {PUB[(t, s+1)]}")
        if (t, s) in PUB: publish(PUB[(t, s)])
        elif pend and pend[0][0] == "m": act_store(pend.pop(0)[1])
        else:
            budget = 16
            while pend and pend[0][0] == "v" and budget >= cost(pend[0][1]):
                budget -= cost(pend[0][1]); a(pend.pop(0)[1])
        if s == 31: assert not pend or t < 2, (t, len(pend))
    stamp(13)
    a(f"v_mov_b32 v{vFV}, 6\ns_nop 10")
    for o in epilogue(6): a(o)
    act_store(6)
    publish(6)
    a(f"v_mov_b32 v{vFV+1}, 7")
    publish(7)
    if opt.get("wb"): a(f"s_cmp_lg_u32 s{sJ}, 0\ns_cbranch_scc1 kb_done\ns_waitcnt vmcnt(0)\nbuffer_wbl2 sc1")
    a("s_branch kb_done")
    a.label("kb_hn_far")
    hn_store(" sc1")
    a("s_branch kb_hn_back")
    slow_path("a")

    a.label("kb_grpb")
    a(f"s_setprio 3\ns_add_u32 s{sO2}, s{sO}, {WS_KV}")
    def kv_round(r):
        a(f"s_add_u32 m0, s{sO}, {r*4096}\ns_add_u32 s{sT}, s{sO2}, {r*4096}")
        a(f"buffer_load_dwordx4 v{vL16}, {ws()}, s{sT} offen lds")
    N1 = 12
    for r in range(N1): kv_round(r)
    vSA, vSD, vTR, vTD, vRO = 100, 101, 102, 103, 104
    sST, sD1, sD2, sS1, sS2 = 63, 26, 27, sT3, sMK
    srd(a, RA, 16, 512*3584); srd(a, RB, 18, 512*3584); srd(a, RD, 20, 1792*1024)
    a(f"""
    s_mul_i32 s{sST}, s{sJ}, 6144
    s_add_u32 s{sST}, s{sST}, {L_STG}
    v_lshrrev_b32 v{vT}, 3, v{vL}
    v_and_b32 v{vT2}, 7, v{vL}
    v_mul_u32_u24 v{vSA}, 3584, v{vT}
    v_lshl_add_u32 v{vSA}, v{vT2}, 4, v{vSA}
    v_lshlrev_b32 v{vSD}, 10, v{vT}
    v_lshl_add_u32 v{vSD}, v{vT2}, 4, v{vSD}
    s_lshl_b32 s{sCNT}, s2, 2
    s_add_u32 s{sCNT}, s{sCNT}, s{sJ}
    s_and_b32 s{sT2}, s{sCNT}, 31
    s_lshr_b32 s{sT}, s{sCNT}, 5
    s_lshl_b32 s{sD1}, s{sT}, 17
    s_lshl_b32 s{sS1}, s{sT}, 7
    s_lshl_b32 s{sT}, s{sT2}, 10
    s_add_u32 s{sD1}, s{sD1}, s{sT}
    s_add_u32 s{sD1}, s{sD1}, {WS_WGU}
    s_mul_i32 s{sT2}, s{sT2}, {16*3584}
    s_add_u32 s{sS1}, s{sS1}, s{sT2}
    s_and_b32 s{sT2}, s{sCNT}, 7
    s_lshr_b32 s{sT}, s{sCNT}, 3
    s_mul_i32 s{sD2}, s{sT2}, {2*FR}
    s_lshl_b32 s{sS2}, s{sT2}, 7
    s_lshl_b32 s{sT2}, s{sT}, 10
    s_add_u32 s{sD2}, s{sD2}, s{sT2}
    s_add_u32 s{sD2}, s{sD2}, {WS_WD}
    s_lshl_b32 s{sT}, s{sT}, 14
    s_add_u32 s{sS2}, s{sS2}, s{sT}
    v_bfe_u32 v{vT}, v{vL}, 2, 2
    v_lshrrev_b32 v{vT2}, 5, v{vL}
    v_lshl_add_u32 v{vT}, v{vT2}, 3, v{vT}
    v_lshl_add_u32 v{vTR}, v{vT}, 7, s{sST}
    v_bfe_u32 v{vT}, v{vL}, 1, 1
    v_lshl_add_u32 v{vTR}, v{vT}, 3, v{vTR}
    v_bfe_u32 v{vT}, v{vL}, 4, 1
    v_lshl_add_u32 v{vTD}, v{vT}, 4, v{vTR}
    v_lshl_add_u32 v{vTR}, v{vT}, 11, v{vTR}
    v_and_b32 v{vT}, 1, v{vL}
    v_lshl_add_u32 v{vTR}, v{vT}, 4, v{vTR}
    v_lshl_add_u32 v{vTD}, v{vT}, 5, v{vTD}
    """)
    attn_addrs(L_OXH)
    a(f"s_waitcnt vmcnt({N1 - R1})\ns_barrier")
    stamp(1)
    for r in range(N1, R3): kv_round(r)
    a(f"s_waitcnt vmcnt({R3 - R2})\ns_barrier")
    for i in range(6):
        r = (RA, RA, RB, RB, RD, RD)[i]
        base, step, va = (sS1, 8*3584, vSA) if i < 4 else (sS2, 8192, vSD)
        a(f"s_add_u32 m0, s{sST}, {i*1024}\ns_add_u32 s{sT}, s{base}, {step*(i&1)}\nbuffer_load_dwordx4 v{va}, s[{r}:{r+3}], s{sT} offen lds")
    for r in range(R3, 33): kv_round(r)
    a(f"s_waitcnt vmcnt({33 - R3})\ns_cmp_ge_u32 s2, 224\ns_cbranch_scc1 kb_rl_done")
    for b in range(6):
        for e in range(2):
            va, off = (vTR, e*512 + b*32) if b < 4 else (vTD, 4096 + e*512 + (b-4)*64)
            a(f"ds_read_b64_tr_b16 {vr(vRO+4*b+2*e,2)}, v{va} offset:{off}")
    for b in range(6):
        d = sD1 if b < 4 else sD2
        a(f"s_waitcnt lgkmcnt({10-2*b})")
        a(f"buffer_store_dwordx4 {vr(vRO+4*b,4)}, v{vL16}, {ws()}, s{d} offen sc1")
        if b not in (3, 5): a(f"s_add_u32 s{d}, s{d}, {0x8000 if b < 4 else FR}")
    a.label("kb_rl_done")
    a(f"""
    s_getreg_b32 s{sT2}, hwreg(HW_REG_XCC_ID, 0, 4)
    s_add_u32 s{sT2}, s{sT2}, 1
    s_lshl_b32 s{sT}, s{sGRP}, 5
    s_add_u32 s{sT}, s{sT}, s{sMEM}
    s_lshl_b32 s{sT}, s{sT}, 2
    s_add_u32 s{sT}, s{sT}, {WS_FLAG + FL_XID}
    v_mov_b32 v100, 1
    v_mov_b32 v101, 0
    v_mov_b32 v102, s{sT2}
    s_mov_b64 exec, 1
    s_cmp_lg_u32 s{sJ}, 0
    s_cbranch_scc1 kb_noxid
    buffer_store_dword v102, v101, {ws()}, s{sT} offen sc1
    """)
    a.label("kb_noxid")
    a("s_barrier"); stamp(2)
    a(f"""
    s_and_b32 s{sT}, s2, 31
    s_lshl_b32 s{sT}, s{sT}, 7
    s_add_u32 s{sT}, s{sT}, {WS_FLAG + FL_RL}
    s_waitcnt vmcnt(0)
    buffer_atomic_add v100, v101, {ws()}, s{sT} offen sc0 sc1
    v_mov_b32 v102, 1
    s_mov_b32 s{sT}, {WS_FLAG + FL_RL + 0x1000}
    s_waitcnt vmcnt(0)
    v_readfirstlane_b32 s{sT2}, v100
    s_cmp_lg_u32 s{sT2}, 31
    s_cbranch_scc1 kb_rl_sent
    buffer_atomic_add v102, v101, {ws()}, s{sT} offen sc0 sc1
    s_waitcnt vmcnt(0)
    v_readfirstlane_b32 s{sT2}, v102
    s_cmp_lg_u32 s{sT2}, 31
    s_cbranch_scc1 kb_rl_sent
    s_mov_b64 exec, 0xffff
    v_lshlrev_b32 v101, 7, v{vL}
    v_mov_b32 v102, 1
    buffer_store_dword v102, v101, {ws()}, s{sT} offen offset:2048 sc1
    """)
    a.label("kb_rl_sent")
    a(f"""
    s_mov_b64 exec, -1
    v_mov_b32 v115, 0
    v_mov_b32 v114, 0
    """)
    stamp(3)
    vW0, vW1, vWD, vAT, vAC4, vHh = 112, 113, 144, 80, 16, 8
    sWD, sAT = sO, sO2
    def wd_addrs():
        a(f"""
        s_and_b32 s{sT}, s{sJ}, 1
        s_mul_i32 s{sT2}, s{sT}, {FR}
        v_add_u32 v{vW0}, s{sT2}, v{vL16}
        s_sub_u32 s{sT2}, {FR}, s{sT2}
        v_add_u32 v{vW1}, s{sT2}, v{vL16}
        """)
    a(f"""
    s_and_b32 s{sT}, s{sMEM}, 7
    s_mul_i32 s{sWD}, s{sT}, {2*FR}
    s_mul_i32 s{sT}, s{sJ}, {28*1024}
    s_add_u32 s{sWD}, s{sWD}, s{sT}
    s_add_u32 s{sWD}, s{sWD}, {WS_WD}
    """)
    wd_addrs()
    vm = VM()
    def koff(u): return (7*(u & 3) + (u >> 2))*1024
    def wd_load(u):
        a(f"s_add_u32 s{sT}, s{sWD}, {koff(u)}")
        for n in range(2):
            a(f"buffer_load_dwordx4 {vr(vWD+8*(u%14)+4*n,4)}, v{(vW0, vW1)[n]}, {ws()}, s{sT} offen sc1")
            vm.issue(("w", u))
    def ready():
        a(f"s_lshl_b32 s{sT2}, s{sGRP}, 7\ns_add_u32 s{sT2}, s{sT2}, {WS_FLAG + FL_RL + 0x1800}")
        poll("rl", 114, 115, sT2, 1, None, sleep=4)
        stamp(4)
        for u in range(14): wd_load(u)
    def mid():
        a("s_barrier"); stamp(5)
    TX = -(-3*32768 // KVT) + 1
    a("s_setprio 1")
    attention("b", {opt.get("n0a", 1): lambda: (bar(), ready()), opt.get("n0", 2): mid, TX: bar}, {})
    stamp(6)
    gu_base()
    a("s_barrier")
    gu_dma(1)
    a("s_barrier")
    stamp(7)
    gu_dma(2); gu_dma(3)
    a("s_waitcnt vmcnt(8)\ns_barrier")
    stamp(8)
    a("s_waitcnt vmcnt(0)\ns_barrier")
    gu_dma(4)
    a(f"""
    v_bfe_u32 v4, v{vL}, 3, 2
    v_add_u32 v4, 3, v4
    v_lshlrev_b32 v4, 10, v4
    v_and_b32 v5, 7, v{vL}
    v_lshl_add_u32 v4, v5, 7, v4
    v_lshrrev_b32 v5, 5, v{vL}
    v_mul_u32_u24 v5, {FR}, v5
    v_add_u32 v4, v4, v5
    s_and_b32 s{sT}, s{sGRP}, 1
    s_lshl_b32 s{sT}, s{sT}, 1
    s_lshr_b32 s{sT2}, s{sMEM}, 3
    s_add_u32 s{sT}, s{sT}, s{sT2}
    s_mul_i32 s{sT}, s{sT}, {7*1024}
    s_add_u32 s{sT}, s{sT}, s{sWD}
    buffer_load_dword v5, v4, {ws()}, s{sT if not opt.get("nowdt") else sMK} offen sc1
    """)
    gu_dma(5); gu_dma(6)
    a("s_waitcnt vmcnt(17)")
    if opt.get("pstamp"): stamp(1, inner=True)
    a("s_barrier\ns_waitcnt vmcnt(16)")
    vW0, vW1, vA0_, vA1_, vPL4, vPA4 = 4, 5, 6, 7, 0, 3
    wd_addrs()
    sFA, sHH = sT3, 63
    a(f"""
    s_lshr_b32 s{sT}, s{sJ}, 1
    s_mul_i32 s{sT2}, s{sT}, {FR}
    v_add_u32 v{vA0_}, s{sT2}, v{vL16}
    s_sub_u32 s{sT2}, {FR}, s{sT2}
    v_add_u32 v{vA1_}, s{sT2}, v{vL16}
    s_lshr_b32 s{sT2}, s{sMEM}, 3
    s_lshl_b32 s{sCNT}, s{sGRP}, 1
    s_add_u32 s{sCNT}, s{sCNT}, s{sT2}
    s_lshl_b32 s{sCNT}, s{sCNT}, 1
    s_lshl_b32 s{sFA}, s{sCNT}, 8
    s_add_u32 s{sFA}, s{sFA}, {WS_FLAG + FL_ACT}
    s_mul_i32 s{sAT}, s{sCNT}, {FR}
    s_mul_i32 s{sT2}, s{sJ}, {28*1024}
    s_add_u32 s{sAT}, s{sAT}, s{sT2}
    s_add_u32 s{sAT}, s{sAT}, {WS_ACT}
    s_add_u32 s{sCNT}, s{sCNT}, s{sT}
    s_lshl_b32 s{sHH}, s{sCNT}, 15
    s_and_b32 s{sT}, s{sMEM}, 7
    s_lshl_b32 s{sT}, s{sT}, 1
    s_and_b32 s{sT2}, s{sJ}, 1
    s_add_u32 s{sT}, s{sT}, s{sT2}
    s_lshl_b32 s26, s{sT}, 6
    s_add_u32 s26, s26, s{sHH}
    s_lshl_b32 s{sT}, s{sT}, 11
    s_add_u32 s{sHH}, s{sHH}, s{sT}
    s_add_u32 s{sHH}, s{sHH}, {WS_H}
    s_lshl_b32 s{sT}, s{sJ}, 2
    s_lshl_b32 s{sMK}, 0xf000f, s{sT}
    v_and_b32 v{vPA4}, 15, v{vL}
    v_lshlrev_b32 v{vPA4}, 2, v{vPA4}
    v_bfe_u32 v16, v{vL}, 4, 1
    v_lshl_add_u32 v{vPA4}, v16, 8, v{vPA4}
    v_and_b32 v16, 31, v{vL}
    v_lshlrev_b32 v16, 4, v16
    v_lshrrev_b32 v17, 5, v{vL}
    v_lshl_add_u32 v16, v17, 10, v16
    v_mov_b32 v{vPL4}, 0
    s_waitcnt vmcnt(0)
    """)
    if opt.get("pstamp"): stamp(2, inner=True)
    a("s_barrier")
    stamp(9)
    poll("act0", vPL4, vPA4, sFA, 2, None)
    stamp(10)
    vm, lg = VM(), VM()
    blk = {("w", u): vWD + 8*u for u in range(14)}
    free = [vAT + 8*i for i in range(8)]
    for u in range(14): vm.pos[("w", u)] = 0
    for h in range(2):
        a(f"buffer_load_dwordx4 {vr(vHh+4*h,4)}, v16, {ws()}, s{sHH} offen offset:{512*h} sc1")
        vm.issue("h")
    def g_load(kind, u):
        r = blk[(kind, u)] = free.pop(0)
        a(f"s_add_u32 s{sT}, s{sAT if kind == 'a' else sWD}, {koff(u)}")
        for n in range(2):
            va = (vA0_, vA1_)[n] if kind == "a" else (vW0, vW1)[n]
            a(f"buffer_load_dwordx4 {vr(r+4*n,4)}, v{va}, {ws()}, s{sT} offen sc1")
            vm.issue((kind, u))
    THR = opt.get("thr", 10)
    for u in range(8):
        g_load("a", u)
        if vm.n > THR: a(f"s_waitcnt vmcnt({THR})")
    for i in range(8):
        a(f"v_lshlrev_b32 v{vAC4+2*i}, 16, v{vHh+i}\nv_and_b32 v{vAC4+2*i+1}, 0xffff0000, v{vHh+i}")
    assert vm.cnt("h") >= THR
    LW0, LW1 = 14, 22
    vLWD, vPN = 8, 9
    a(f"s_lshl_b32 s{sT2}, s{sJ}, 14\ns_add_u32 s{sT2}, s{sT2}, 0x8000\nv_add_u32 v{vLWD}, s{sT2}, v{vL16}")
    def poll_issue():
        a(f"buffer_load_dword v{vPN}, v{vPA4}, {ws()}, s{sFA} offen sc1"); vm.issue("p")
    for u in range(LW0, LW1):
        for n in range(2):
            a(f"s_add_u32 m0, s{sT2}, {(u-LW0)*2048 + n*1024}")
            a(f"s_add_u32 s{sT}, s{sWD}, {koff(u)}" if n == 0 else "s_nop 0")
            a(f"buffer_load_dwordx4 v{(vW0, vW1)[n]}, {ws()}, s{sT} offen sc1 lds"); vm.issue(("l", u))
        a(f"s_waitcnt vmcnt({THR})")
        if u == LW1 - 3: poll_issue()
    a(f"s_setprio {opt.get('p4prio', 0)}")
    GATE = {0: 3, 3: 4, 6: 5, 10: 6, 13: 7}
    PI, PR = {0: 3, 3: 6, 6: 10}, {-1: 0}
    if opt.get("sched") == 1: GATE, PI = {0: 3, 3: 4, 6: 5, 9: 6, 12: 7}, {1: 6, 6: 9, 9: 12}
    PR = {0} | set(PI.values())
    queue = sorted([("a", u) for u in range(8, 28)] + [("w", u) for u in range(LW1, 28)], key=lambda k: (k[1], k[0]))
    avail = 2
    LAH = opt.get("lah", 11)
    for u in range(28):
        w = f"vmcnt({min(63, vm.cnt(('a', u)), *([] if LW0 <= u < LW1 else [vm.cnt(('w', u))]))})"
        if LW0 <= u < LW1: w += f" lgkmcnt({lg.cnt(u)})"
        a("s_waitcnt " + w)
        if opt.get("pstamp") and u % 4 == 0 and u < 24: stamp(3 + u//4, wait=False, inner=True)
        for k in (1, 2, 3, 0):
            A = vAC4 + 16*k
            mf32(A, blk[("w", u)] + 4*(k & 1), blk[("a", u)] + 4*(k >> 1), "0" if (u == 0 and k) else A)
        free += [blk[("w", u)], blk[("a", u)]]
        if LW0 <= u + 2 < LW1:
            r = blk[("w", u+2)] = free.pop(0)
            if u + 2 == LW0: a(f"s_waitcnt vmcnt({min(63, vm.cnt(('l', LW1-1)))})")
            for n in range(2):
                a(f"ds_read_b128 {vr(r+4*n,4)}, v{vLWD} offset:{(u+2-LW0)*2048 + n*1024}"); lg.issue(u + 2)
        if u in PR: a(f"s_waitcnt vmcnt({vm.cnt('p')})\nv_max_u32 v{vPL4}, v{vPL4}, v{vPN}")
        if u in GATE:
            avail = GATE[u]
            poll(f"act{avail}", vPL4, vPA4, sFA, avail, sMK)
            if avail == 7: stamp(11)
        if u in PI: poll_issue()
        if u == 20: a("s_barrier")
        for key in list(queue):
            if not free or key[1] > u + LAH: break
            if key[0] == "a" and key[1] >= 4*avail: continue
            g_load(*key); queue.remove(key)
    assert not queue
    stamp(12)
    for k in range(1, 4):
        a(f"s_xor_b32 s{sT}, s{sJ}, {k}\ns_mul_i32 s{sT}, s{sT}, {3*4096}\ns_add_u32 s{sT}, s{sT}, {L_RED + (k-1)*4096}")
        a(f"v_add_u32 v{4+k}, s{sT}, v{vL16}")
    a(f"s_mul_i32 s{sT}, s{sJ}, {3*4096}\ns_add_u32 s{sT}, s{sT}, {L_RED}\nv_add_u32 v4, s{sT}, v{vL16}")
    for k in range(1, 4):
        for q in range(4):
            a(f"ds_write_b128 v{4+k}, {vr(vAC4+16*k+4*q,4)} offset:{q*1024}")
    srd(a, OUT, 22, 2048*1024)
    a(f"""
    v_and_b32 v8, 31, v{vL}
    v_lshlrev_b32 v8, 10, v8
    v_lshrrev_b32 v9, 5, v{vL}
    v_lshl_add_u32 v8, v9, 5, v8
    s_waitcnt lgkmcnt(0)
    s_barrier
    """)
    stamp(13)
    for q in range(4):
        for k in range(3):
            a(f"ds_read_b128 {vr(32+16*k+4*q,4)}, v4 offset:{k*4096 + q*1024}")
    for q in range(4):
        a(f"s_waitcnt lgkmcnt({9-3*q})")
        for r in range(4*q, 4*q + 4):
            a(f"v_add_f32 v{vAC4+r}, v{vAC4+r}, v{32+r}\nv_add_f32 v{48+r}, v{48+r}, v{64+r}")
        for r in range(4*q, 4*q + 4): a(f"v_add_f32 v{vAC4+r}, v{vAC4+r}, v{48+r}")
        for r in range(2*q, 2*q + 2): a(f"v_cvt_pk_bf16_f32 v{80+r}, v{vAC4+2*r}, v{vAC4+2*r+1}")
        if q & 1:
            a(f"buffer_store_dwordx4 {vr(80+4*(q>>1),4)}, v8, s[{OUT}:{OUT+3}], s26 offen offset:{16*(q>>1)}" + (" sc1" if opt.get("outsc1") else ""))
    a("s_branch kb_done")
    slow_path("b")

    a.label("kb_done")
    if opt.get("stamp"):
        a("s_waitcnt vmcnt(0)")
        stamp(14)
        a(f"""
        s_lshl_b32 s{sT}, s2, 3
        s_add_u32 s{sT}, s{sT}, s{sW}
        s_lshl_b32 s{sT}, s{sT}, 6
        s_add_u32 s{sT}, s{sT}, {WS_DBG + 0x10000}
        v_mov_b32 v1, 0
        """)
        for i in range(16): a(f"v_mov_b32 v{4+i}, s{64+2*min(i,14)}")
        for i in range(4): a(f"buffer_store_dwordx4 {vr(4+4*i,4)}, v1, {ws()}, s{sT} offen offset:{16*i}")
    a.label("kb_exit")
    a("s_endpgm")
```

```python
import sys, os
sys.path.insert(0, os.path.dirname(os.path.abspath(__file__)))
from asmlib import *
from layout import *
import ka

def kd(name, vgpr, sgpr=102):
    return f""".p2align 6
.amdhsa_kernel {name}
  .amdhsa_next_free_vgpr {vgpr}
  .amdhsa_next_free_sgpr {sgpr}
  .amdhsa_accum_offset {(vgpr+3)//4*4}
  .amdhsa_group_segment_fixed_size 0
  .amdhsa_kernarg_size 96
  .amdhsa_user_sgpr_count 2
  .amdhsa_user_sgpr_kernarg_segment_ptr 1
  .amdhsa_system_sgpr_workgroup_id_x 1
.end_amdhsa_kernel
"""

def build(opt):
    ref = open(f"cdna_kernels/{NAME}.s.ref").read().split("\n")
    head = [l for l in ref if l.startswith(";") and "@launch" not in l and "Override" not in l and "grid=ceil" not in l]
    kernels = [("qkv_kernel", ka.gen_ka, ka.KA_LDS, 128)]
    if not opt.get("only_a"):
        import kb
        kernels.append((NAME + "_kernel", kb.gen_kb, kb.KB_LDS, 256))
    out = "\n".join(head) + "\n"
    lines = [f"; @launch kernel={n} grid=(256,1,1) block=(512,1,1) lds={lds}\n" for n, _, lds, _ in kernels]
    if opt.get("empty") is not None:
        def ge(a, n, o): a.label(n); a("s_endpgm")
        kernels.append(("nop_kernel", ge, 0, 8))
        for _ in range(opt.get("nempty", 1)): lines.insert(opt["empty"], "; @launch kernel=nop_kernel grid=(256,1,1) block=(64,1,1) lds=0\n")
    out += "".join(lines)
    out += '.amdgcn_target "amdgcn-amd-amdhsa--gfx950"\n.text\n'
    nerr = 0
    for n, g, _, _ in kernels:
        a = Asm()
        g(a, n, opt)
        errs = check_hazards(a.text())
        for e in errs[:40]: print(e)
        nerr += len(errs)
        out += f".globl {n}\n.p2align 8\n.type {n},@function\n" + a.text()
    out += '.section .rodata,"a"\n'
    for n, _, _, v in kernels: out += kd(n, v)
    assert nerr == 0, f"{nerr} hazards"
    return out

if __name__ == "__main__":
    opt = {}
    path = f"cdna_kernels/{NAME}.s"
    for x in sys.argv[1:]:
        if x.endswith(".s"): path = x
        elif "=" in x:
            k, v = x.split("="); opt[k] = int(v)
        else: opt[x] = 1
    open(path, "w").write(build(opt))
    print("wrote", path)
```

```python
from asmlib import *
from layout import *

LDS_X, LDS_W, LDS_KV, LDS_SC = 0, 65536, 131072, 147456
SC_MEAN, SC_RSTD, SC_CS = LDS_SC, LDS_SC + 256, LDS_SC + 512
LDS_RO = LDS_SC + 1024
KA_LDS = LDS_RO + 4096

def srd(a, d, base, size):
    a(f"s_mov_b32 s{d}, s{base}\ns_mov_b32 s{d+1}, s{base+1}\ns_mov_b32 s{d+2}, {size:#x}\ns_mov_b32 s{d+3}, 0x00020000")

def code_touch(a, tag, start, end, vidx, v0, s0):
    a(f"s_getpc_b64 s[{s0}:{s0+1}]")
    a.label(f"ct_{tag}")
    if start is None: start = f"ct_{tag}"
    else: a(f"s_add_u32 s{s0}, s{s0}, {start}-ct_{tag}\ns_addc_u32 s{s0+1}, s{s0+1}, 0")
    a(f"""
    v_lshlrev_b32 v{v0}, 7, v{vidx}
    v_mov_b32 v{v0+1}, s{s0+1}
    v_cmp_gt_u32 vcc, {end}-{start}, v{v0}
    s_and_saveexec_b64 s[{s0+2}:{s0+3}], vcc
    s_cbranch_execz ct_skip_{tag}
    v_add_co_u32 v{v0}, vcc, s{s0}, v{v0}
    s_nop 1
    v_addc_co_u32 v{v0+1}, vcc, 0, v{v0+1}, vcc
    global_load_dword v{v0+2}, v[{v0}:{v0+1}], off
    """)
    a.label(f"ct_skip_{tag}")
    a(f"s_mov_b64 exec, -1")

def gen_ka(a, name, opt):
    X, WQ, WKV, WS = 16, 20, 24, 28
    sRB, sCB, sROT, sW, sT, sT2, sM = 32, 33, 34, 35, 36, 37, 38
    vL, vXA, vXB, vWA, vKA, vT, vT2 = 1, 2, 3, 4, 5, 6, 7
    a.label(name)
    a(f"""
    s_cmp_ge_u32 s2, 256
    s_cbranch_scc1 ka_exit
    s_load_dwordx8 s[4:11], s[0:1], 0
    s_load_dwordx2 s[12:13], s[0:1], 88
    s_load_dwordx2 s[14:15], s[0:1], 32
    s_load_dwordx4 s[76:79], s[0:1], 48
    s_load_dwordx2 s[80:81], s[0:1], 64
    """)
    def stamp(i):
        if opt.get("stamp"): a(f"s_memrealtime s[{60+2*i}:{61+2*i}]")
    stamp(0)
    if not opt.get("nopf"): code_touch(a, "a", None, "ka_exit", 0, 24, 48)
    a(f"""
    v_lshrrev_b32 v{vT}, 6, v0
    v_and_b32 v{vL}, 63, v0
    s_lshr_b32 s{sT}, s2, 3
    v_readfirstlane_b32 s{sW}, v{vT}
    s_and_b32 s{sCB}, s{sT}, 7
    s_lshr_b32 s{sT}, s{sT}, 3
    s_add_u32 s{sROT}, s{sT}, s{sCB}
    s_and_b32 s{sROT}, s{sROT}, 3
    s_and_b32 s{sRB}, s2, 7
    s_lshl_b32 s{sRB}, s{sRB}, 2
    s_add_u32 s{sRB}, s{sRB}, s{sT}
    """)
    a(f"""
    v_lshrrev_b32 v{vT2}, 4, v{vL}
    v_lshl_add_u32 v{vT}, v{vT}, 3, v{vT2}
    v_xor_b32 v{vXA}, v{vL}, v{vT}
    v_and_b32 v{vXA}, 15, v{vXA}
    v_lshlrev_b32 v{vXA}, 4, v{vXA}
    v_lshl_add_u32 v{vXA}, v{vT}, 10, v{vXA}
    v_xor_b32 v{vXB}, 64, v{vXA}
    v_add_u32 v{vXB}, 0x1000, v{vXB}
    v_and_b32 v{vT2}, 1, v{vT2}
    v_lshlrev_b32 v{vT2}, 2, v{vT2}
    v_xor_b32 v{vT2}, v{vT2}, v{vL}
    v_and_b32 v{vT2}, 7, v{vT2}
    v_lshlrev_b32 v{vT2}, 4, v{vT2}
    v_lshrrev_b32 v{vWA}, 3, v{vL}
    v_lshl_add_u32 v{vWA}, v{vWA}, 10, v{vT2}
    v_lshlrev_b32 v{vKA}, 4, v{vL}
    s_waitcnt lgkmcnt(0)
    """)
    srd(a, X, 4, 2048*1024)
    srd(a, WQ, 6, 512*1024)
    a(f"""
    s_bitcmp1_b32 s{sCB}, 0
    s_cselect_b32 s{WKV}, s10, s8
    s_cselect_b32 s{WKV+1}, s11, s9
    s_mov_b32 s{WKV+2}, 0x4000
    s_mov_b32 s{WKV+3}, 0x00020000
    """)
    sXO, sWO, sKC, sMW = 40, 41, 42, 43
    a(f"""
    s_lshl_b32 s{sMW}, s{sW}, 11
    s_lshl_b32 s{sXO}, s{sRB}, 16
    s_lshl_b32 s{sWO}, s{sW}, 14
    s_lshl_b32 s{sT}, s{sCB}, 7
    s_add_u32 s{sWO}, s{sWO}, s{sT}
    """)
    def issue(i):
        a(f"""
        s_add_u32 s{sKC}, s{sROT}, {i}
        s_and_b32 s{sKC}, s{sKC}, 3
        s_lshl_b32 s46, s{sKC}, 8
        s_add_u32 s46, s46, s{sXO}
        s_add_u32 m0, s{sMW}, {LDS_X + i*16384}
        s_lshl_b32 s47, s{sKC}, 17
        buffer_load_dwordx4 v{vXA}, s[{X}:{X+3}], s46 offen lds
        s_add_u32 m0, s{sMW}, {LDS_X + i*16384 + 1024}
        s_add_u32 s47, s47, s{sWO}
        buffer_load_dwordx4 v{vXB}, s[{X}:{X+3}], s46 offen lds
        s_add_u32 m0, s{sMW}, {LDS_W + i*16384}
        s_add_u32 s46, s47, 0x2000
        buffer_load_dwordx4 v{vWA}, s[{WQ}:{WQ+3}], s47 offen lds
        s_add_u32 m0, s{sMW}, {LDS_W + i*16384 + 1024}
        s_nop 0
        buffer_load_dwordx4 v{vWA}, s[{WQ}:{WQ+3}], s46 offen lds
        """)
    issue(0)
    a(f"""
    s_lshl_b32 s{sT}, s{sROT}, 12
    s_add_u32 s{sT}, s{sT}, s{sMW}
    s_add_u32 m0, s{sMW}, {LDS_KV}
    s_and_b32 s{sT}, s{sT}, 0x3fff
    buffer_load_dwordx4 v{vKA}, s[{WKV}:{WKV+3}], s{sT} offen lds
    buffer_load_dwordx4 v{vKA}, s[{WKV}:{WKV+3}], s{sT} offen offset:1024 lds
    """)
    srd(a, WS, 12, WS_SIZE)
    stamp(1)
    if opt.get("stamp"): a("s_waitcnt lgkmcnt(0)")
    def chunk_wait(i):
        if opt.get("pre"): stamp(2 + i)
        if i == 0:
            a("s_barrier")
            issue(1)
        a(f"s_waitcnt vmcnt({4 if i < 3 else 0})\ns_barrier")
        if not opt.get("pre"): stamp(2 + i)
        if opt.get("stamp"): a("s_waitcnt lgkmcnt(0)")
    def chunk_next(i):
        if i < 2: issue(i + 2)
    vTok, vKH = 8, 9
    a(f"""
    v_and_b32 v{vTok}, 31, v{vL}
    v_lshrrev_b32 v{vKH}, 5, v{vL}
    s_cmp_ge_u32 s{sW}, 4
    s_cbranch_scc1 ka_help
    """)
    vXF = 10
    a(f"""
    s_and_b32 s{sT}, s{sW}, 1
    s_lshl_b32 s{sT}, s{sT}, 13
    v_xor_b32 v{vT}, v{vKH}, v{vTok}
    v_and_b32 v{vT}, 15, v{vT}
    v_lshlrev_b32 v{vT}, 4, v{vT}
    v_lshl_add_u32 v{vT}, v{vTok}, 8, v{vT}
    v_add_u32 v{vXF}, s{sT}, v{vT}
    """)
    for s in range(1, 8):
        a(f"v_xor_b32 v{vXF+s}, {s << 5}, v{vXF}")

    def w_frag_addr(dst, ft_sgpr):
        a(f"""
        v_bfe_u32 v{vT}, v{vL}, 2, 2
        v_lshl_add_u32 v{vT}, v{vKH}, 3, v{vT}
        v_lshlrev_b32 v{dst}, 7, v{vT}
        v_bfe_u32 v{vT}, v{vL}, 3, 1
        v_lshlrev_b32 v{vT}, 6, v{vT}
        """)
        if ft_sgpr is not None:
            a(f"v_xor_b32 v{vT}, s{ft_sgpr}, v{vT}")
        a(f"""
        v_add_u32 v{dst}, v{dst}, v{vT}
        v_bfe_u32 v{vT}, v{vL}, 4, 1
        v_lshl_add_u32 v{dst}, v{vT}, 5, v{dst}
        v_and_b32 v{vT}, 1, v{vL}
        v_lshl_add_u32 v{dst}, v{vT}, 4, v{dst}
        v_bfe_u32 v{vT}, v{vL}, 1, 1
        v_lshl_add_u32 v{dst}, v{vT}, 3, v{dst}
        v_add_u32 v{dst}, {LDS_W}, v{dst}
        """)

    vWF, vAcc, vFr = 18, 32, 64
    a(f"s_lshr_b32 s{sT2}, s{sW}, 1\ns_lshl_b32 s{sT2}, s{sT2}, 6")
    w_frag_addr(vWF, sT2)
    vQO, vCSA, vSTA = 19, 20, 21
    a(f"""
    s_and_b32 s{sT}, s{sW}, 1
    s_lshl_b32 s{sT}, s{sT}, 5
    v_add_u32 v{vT}, s{sT}, v{vTok}
    v_lshlrev_b32 v{vSTA}, 2, v{vT}
    v_add_u32 v{vSTA}, {SC_MEAN}, v{vSTA}
    v_lshrrev_b32 v{vT2}, 3, v{vT}
    v_lshlrev_b32 v{vQO}, 13, v{vT2}
    v_and_b32 v{vT}, 7, v{vT}
    v_lshl_add_u32 v{vQO}, v{vT}, 4, v{vQO}
    v_lshl_add_u32 v{vQO}, v{vKH}, 9, v{vQO}
    s_lshl_b32 s{sT}, s{sT2}, 1
    s_add_u32 s{sT}, s{sT}, {SC_CS}
    v_lshl_add_u32 v{vCSA}, v{vKH}, 4, s{sT}
    s_lshl_b32 s{sT2}, s{sT2}, 2
    s_lshl_b32 s{sT}, s{sCB}, 10
    s_add_u32 s{sT2}, s{sT2}, s{sT}
    s_add_u32 s{sM}, s{sT2}, s{sXO}
    """)
    TS, sTO = 52, 56
    a(f"""
    s_cmp_eq_u32 s{sW}, 1
    s_cselect_b32 s{TS}, s78, s76
    s_cselect_b32 s{TS+1}, s79, s77
    s_cmp_ge_u32 s{sW}, 2
    s_cselect_b32 s{TS}, s80, s{TS}
    s_cselect_b32 s{TS+1}, s81, s{TS+1}
    s_mov_b32 s{TS+2}, {512*3584}
    s_mov_b32 s{TS+3}, 0x00020000
    s_cbranch_scc1 ka_td
    v_mul_u32_u24 v27, 3584, v{vL}
    s_and_b32 s{sTO}, s2, 7
    s_mul_i32 s{sTO}, s{sTO}, {64*3584}
    s_lshr_b32 s57, s2, 3
    s_lshl_b32 s57, s57, 7
    s_add_u32 s{sTO}, s{sTO}, s57
    s_branch ka_te
    """)
    a.label("ka_td")
    a(f"""
    v_lshrrev_b32 v27, 2, v{vL}
    v_lshlrev_b32 v27, 10, v27
    v_and_b32 v{vT}, 3, v{vL}
    v_lshl_add_u32 v27, v{vT}, 7, v27
    s_lshr_b32 s{sTO}, s2, 1
    s_lshl_b32 s{sTO}, s{sTO}, 14
    s_and_b32 s57, s2, 1
    s_lshl_b32 s57, s57, 9
    s_add_u32 s{sTO}, s{sTO}, s57
    """)
    a.label("ka_te")
    a(f"""
    s_cmp_eq_u32 s{sW}, 3
    s_cselect_b32 s{sTO}, 0x40000000, s{sTO}
    s_cmp_ge_u32 s2, 224
    s_cselect_b32 s{sTO}, 0x40000000, s{sTO}
    """)
    def q_reads(i, s):
        f = vFr + 8*s
        a(f"ds_read_b128 {vr(f,4)}, v{vXF+s} offset:{i*16384}")
        a(f"ds_read_b64_tr_b16 {vr(f+4,2)}, v{vWF} offset:{(8*i+s)*2048}")
        a(f"ds_read_b64_tr_b16 {vr(f+6,2)}, v{vWF} offset:{(8*i+s)*2048+512}")
    for i in range(4):
        chunk_wait(i)
        for s in range(4): q_reads(i, s)
        chunk_next(i)
        if i == 3 and not opt.get("notouch"):
            a.comment("waves 0-2 pull the sources of this workgroup's later re-layout units into L2")
            a(f"buffer_load_dword v26, v27, s[{TS}:{TS+3}], s{sTO} offen")
        for s in range(8):
            a(f"s_waitcnt lgkmcnt({3*(min(s+3,7)-s)})")
            f = vFr + 8*s
            c = "0" if (i == 0 and s == 0) else vr(vAcc, 16)
            a(f"v_mfma_f32_32x32x16_bf16 {vr(vAcc,16)}, {vr(f+4,4)}, {vr(f,4)}, {c}")
            if s + 4 < 8: q_reads(i, s + 4)
    vCS, vMean, vRs = 48, 22, 23
    a("s_barrier")
    a(f"ds_read_b32 v{vMean}, v{vSTA}\nds_read_b32 v{vRs}, v{vSTA} offset:256")
    for q in range(4):
        a(f"ds_read_b128 {vr(vCS+4*q,4)}, v{vCSA} offset:{32*q}")
    a(f"""
    s_waitcnt lgkmcnt(4)
    v_mul_f32 v{vRs}, {f32(0.25*LOG2E)}, v{vRs}
    v_mul_f32 v{vMean}, v{vMean}, v{vRs}
    s_waitcnt lgkmcnt(0)
    """)
    for r in range(16): a(f"v_mul_f32 v{vCS+r}, v{vCS+r}, v{vMean}")
    for r in range(16): a(f"v_fma_f32 v{vAcc+r}, v{vAcc+r}, v{vRs}, -v{vCS+r}")
    for r in range(8): a(f"v_cvt_pk_bf16_f32 v{vFr+r}, v{vAcc+2*r}, v{vAcc+2*r+1}")
    a(f"""
    buffer_store_dwordx4 {vr(vFr,4)}, v{vQO}, s[{WS}:{WS+3}], s{sM} offen sc1
    buffer_store_dwordx4 {vr(vFr+4,4)}, v{vQO}, s[{WS}:{WS+3}], s{sM} offen offset:128 sc1
    s_branch ka_done
    """)

    a.label("ka_help")
    vT16, vG, vWK, vW16, vOn4 = 8, 9, 14, 17, 20
    vD, vD2, vSum, vGr, vCs = 32, 36, 40, 44, 48
    sTQ, sJ = 44, 45
    a(f"""
    s_lshr_b32 s{sTQ}, s{sCB}, 1
    s_and_b32 s{sJ}, s{sW}, 3
    v_and_b32 v{vT16}, 15, v{vL}
    v_lshrrev_b32 v{vG}, 4, v{vL}
    s_lshl_b32 s{sT}, s{sJ}, 12
    v_xor_b32 v{vT}, v{vG}, v{vT16}
    v_lshlrev_b32 v{vT}, 4, v{vT}
    v_lshl_add_u32 v{vT}, v{vT16}, 8, v{vT}
    v_add_u32 v10, s{sT}, v{vT}
    v_xor_b32 v11, 64, v10
    v_xor_b32 v12, 0x80, v10
    v_xor_b32 v13, 0xc0, v10
    v_bfe_u32 v{vT}, v{vL}, 2, 2
    v_lshl_add_u32 v{vT}, v{vG}, 3, v{vT}
    v_lshlrev_b32 v{vWK}, 5, v{vT}
    v_lshlrev_b32 v{vW16}, 7, v{vT}
    v_and_b32 v{vT}, 3, v{vL}
    v_lshl_add_u32 v{vWK}, v{vT}, 3, v{vWK}
    v_add_u32 v{vWK}, {LDS_KV}, v{vWK}
    s_lshl_b32 s{sT}, s{sJ}, 5
    v_bfe_u32 v{vT}, v{vL}, 3, 1
    v_lshlrev_b32 v{vT}, 6, v{vT}
    v_xor_b32 v{vT}, s{sT}, v{vT}
    v_add_u32 v{vW16}, v{vW16}, v{vT}
    v_and_b32 v{vT}, 1, v{vL}
    v_lshl_add_u32 v{vW16}, v{vT}, 4, v{vW16}
    v_bfe_u32 v{vT}, v{vL}, 1, 1
    v_lshl_add_u32 v{vW16}, v{vT}, 3, v{vW16}
    v_add_u32 v{vW16}, {LDS_W}, v{vW16}
    s_lshl_b32 s{sT}, s{sRB}, 1
    s_lshr_b32 s{sT2}, s{sTQ}, 1
    s_add_u32 s{sT}, s{sT}, s{sT2}
    s_mul_i32 s{sM}, s{sT}, {KVT}
    s_add_u32 s{sM}, s{sM}, {WS_KV}
    s_lshl_b32 s{sT}, s{sJ}, 6
    s_add_u32 s{sT}, s{sT}, {SC_MEAN}
    v_lshl_add_u32 v18, v{vT16}, 2, s{sT}
    s_and_b32 s{sT2}, s{sTQ}, 1
    """)
    for r in range(4): a(f"v_mov_b32 v{vOn4+r}, {ONES:#x}")
    if not opt.get("nopf") and not opt.get("only_a"):
        a(f"s_cmp_lg_u32 s{sJ}, 0\ns_cbranch_scc1 ka_nopf\ns_lshl_b32 s48, s{sCB}, 6\nv_add_u32 v27, s48, v{vL}")
        code_touch(a, "b", NAME + "_kernel", "kb_exit", 27, 24, 48)
        a.label("ka_nopf")
    RO, sRL, vRA, vRT = 52, 56, 28, 29
    srd(a, RO, 14, 512*1024)
    a(f"""
    s_xor_b32 s48, s{sTQ}, 2
    s_cmp_eq_u32 s{sJ}, s48
    s_cselect_b32 s{sRL}, s2, 0x1000
    s_cmp_ge_u32 s{sRL}, 128
    s_cbranch_scc1 ka_norl
    v_lshrrev_b32 v{vT}, 3, v{vL}
    v_lshlrev_b32 v{vRA}, 10, v{vT}
    v_bfe_u32 v{vT}, v{vL}, 1, 2
    v_lshl_add_u32 v{vRA}, v{vT}, 6, v{vRA}
    v_and_b32 v{vT}, 1, v{vL}
    v_lshl_add_u32 v{vRA}, v{vT}, 4, v{vRA}
    s_bfe_u32 s48, s{sRL}, 0x40001
    s_lshl_b32 s48, s48, 15
    s_lshr_b32 s49, s{sRL}, 5
    s_lshl_b32 s49, s49, 8
    s_add_u32 s48, s48, s49
    s_and_b32 s49, s{sRL}, 1
    s_lshl_b32 s49, s49, 5
    s_add_u32 s48, s48, s49
    """)
    for i in range(4):
        a(f"s_mov_b32 m0, {LDS_RO + i*1024}\ns_add_u32 s49, s48, {i*8192}\nbuffer_load_dwordx4 v{vRA}, s[{RO}:{RO+3}], s49 offen lds")
    a.label("ka_norl")
    a(f"""
    s_cmp_lg_u32 s{sJ}, s{sTQ}
    s_cbranch_scc1 ka_h0
    s_bitcmp1_b32 s{sCB}, 0
    s_cbranch_scc1 ka_h2
    """)
    for mode in (1, 2, 0):
        isv = mode == 2
        a.label(f"ka_h{mode}")
        if mode == 2:
            a(f"""
            v_lshl_add_u32 v15, v{vG}, 4, s{sT}
            s_mul_i32 s{sT2}, s{sT2}, {VH}
            s_add_u32 s{sM}, s{sM}, s{sT2}
            v_lshrrev_b32 v{vT}, 1, v{vG}
            v_lshlrev_b32 v16, 8, v{vT}
            v_lshl_add_u32 v16, v{vT16}, 4, v16
            v_and_b32 v{vT}, 1, v{vG}
            v_lshl_add_u32 v16, v{vT}, 3, v16
            """)
        elif mode == 1:
            a(f"""
            s_lshl_b32 s{sT2}, s{sT2}, 8
            s_add_u32 s{sM}, s{sM}, s{sT2}
            v_lshrrev_b32 v{vT}, 1, v{vG}
            v_lshlrev_b32 v16, 9, v{vT}
            v_lshl_add_u32 v16, v{vT16}, 4, v16
            v_and_b32 v{vT}, 1, v{vG}
            v_lshl_add_u32 v16, v{vT}, 3, v16
            """)
        nr = 5 if mode else 3
        def h_reads(i, s):
            f = vFr + 12*s
            a(f"ds_read_b128 {vr(f,4)}, v{10+s} offset:{i*16384}")
            a(f"ds_read_b64_tr_b16 {vr(f+4,2)}, v{vW16} offset:{(4*i+s)*4096}")
            a(f"ds_read_b64_tr_b16 {vr(f+6,2)}, v{vW16} offset:{(4*i+s)*4096+512}")
            if mode:
                a(f"ds_read_b64_tr_b16 {vr(f+8,2)}, v{vWK} offset:{(4*i+s)*1024}")
                a(f"ds_read_b64_tr_b16 {vr(f+10,2)}, v{vWK} offset:{(4*i+s)*1024+128}")
        def m16(d, x, y, first):
            a(f"v_mfma_f32_16x16x32_bf16 {vr(d,4)}, {x}, {y}, {'0' if first else vr(d,4)}")
        for i in range(4):
            chunk_wait(i)
            for s in range(3): h_reads(i, s)
            chunk_next(i)
            for s in range(4):
                f = vFr + 12*s
                first = i == 0 and s == 0
                a(f"s_waitcnt lgkmcnt({nr*(min(s+2,3)-s)})")
                xa, wa, ka_, on = vr(f,4), vr(f+4,4), vr(f+8,4), vr(vOn4,4)
                m16(vGr, xa, xa, first)
                if s == 0: h_reads(i, 3)
                m16(vSum, on, xa, first)
                m16(vCs, on, wa, first)
                if mode:
                    p1, p2 = ((xa, ka_), (on, ka_)) if isv else ((ka_, xa), (ka_, on))
                    m16(vD, p1[0], p1[1], first)
                    m16(vD2, p2[0], p2[1], first)
        a(f"s_nop {1 if mode else 3}")
        for r in range(1, 4):
            a(f"s_mov_b32 exec_lo, {0x00100001 << r:#x}\ns_mov_b32 exec_hi, {0x10000100 << r:#x}")
            a(f"v_mov_b32 v{vGr}, v{vGr+r}")
        a(f"""
        s_mov_b32 exec_lo, 0x00f0000f
        s_mov_b32 exec_hi, 0xf0000f00
        v_mul_f32 v{vSum}, {f32(1/512)}, v{vSum}
        v_mul_f32 v{vGr}, {f32(1/512)}, v{vGr}
        v_fma_f32 v{vGr}, -v{vSum}, v{vSum}, v{vGr}
        v_max_f32 v{vGr}, 0, v{vGr}
        v_add_f32 v{vGr}, {f32(1e-5)}, v{vGr}
        v_rsq_f32 v{vGr}, v{vGr}
        ds_write_b32 v18, v{vSum}
        ds_write_b32 v18, v{vCs} offset:512
        ds_write_b32 v18, v{vGr} offset:256
        s_mov_b64 exec, -1
        s_waitcnt lgkmcnt(0)
        s_barrier
        """)
        if mode == 0:
            a.comment("one helper wave clears this workgroup's share of the flags")
            a(f"""
            s_cmp_lt_u32 s{sRL}, 128
            s_cbranch_scc1 ka_rl
            s_xor_b32 s{sT}, s{sTQ}, 1
            s_cmp_lg_u32 s{sJ}, s{sT}
            s_cbranch_scc1 ka_done
            s_lshl_b32 s{sT}, s2, 8
            s_add_u32 s{sT}, s{sT}, {WS_FLAG}
            v_lshlrev_b32 v{vT}, 2, v{vL}
            v_mov_b32 v{vT2}, 0
            buffer_store_dword v{vT2}, v{vT}, s[{WS}:{WS+3}], s{sT} offen sc1
            s_branch ka_done
            """)
            a.label("ka_rl")
            a(f"""
            v_bfe_u32 v{vRT}, v{vL}, 2, 3
            v_lshrrev_b32 v{vT}, 5, v{vL}
            v_lshl_add_u32 v{vRT}, v{vT}, 4, v{vRT}
            v_lshlrev_b32 v{vRT}, 7, v{vRT}
            v_and_b32 v{vT}, 3, v{vL}
            v_lshl_add_u32 v{vRT}, v{vT}, 5, v{vRT}
            v_add_u32 v{vRT}, {LDS_RO}, v{vRT}
            s_lshl_b32 s{sT}, s{sRL}, 12
            s_add_u32 s{sT}, s{sT}, {WS_WO}
            """)
            for b in range(4):
                for e in range(2): a(f"ds_read_b64_tr_b16 {vr(vFr+4*b+2*e,2)}, v{vRT} offset:{e*1024 + b*8}")
            for b in range(4):
                a(f"s_waitcnt lgkmcnt({6-2*b})\nbuffer_store_dwordx4 {vr(vFr+4*b,4)}, v{vKA}, s[{WS}:{WS+3}], s{sT} offen offset:{b*1024} sc1")
            continue
        if isv:
            a("ds_read_b128 v[40:43], v15\nds_read_b128 v[44:47], v15 offset:256")
        else:
            a("ds_read_b32 v40, v18\nds_read_b32 v44, v18 offset:256")
        a("s_waitcnt lgkmcnt(0)")
        for r in range(4):
            a(f"v_fma_f32 v{vD+r}, -v{vD2+r}, v{40+(r if isv else 0)}, v{vD+r}")
        for r in range(4):
            a(f"v_mul_f32 v{vD+r}, v{vD+r}, v{44+(r if isv else 0)}")
        a(f"""
        v_cvt_pk_bf16_f32 v{vD}, v{vD}, v{vD+1}
        v_cvt_pk_bf16_f32 v{vD+1}, v{vD+2}, v{vD+3}
        buffer_store_dwordx2 {vr(vD,2)}, v16, s[{WS}:{WS+3}], s{sM} offen offset:{1024 if isv else 0} sc1
        """)
        if isv:
            a(f"""
            s_mov_b64 exec, 2
            v_mov_b32 v{vOn4}, 0
            v_mov_b32 v{vOn4+1}, 0
            v_mov_b32 v{vOn4+2}, 0
            v_mov_b32 v{vOn4+3}, 0
            s_mov_b64 exec, 3
            buffer_store_dwordx4 {vr(vOn4,4)}, v16, s[{WS}:{WS+3}], s{sM} offen offset:1536 sc1
            s_mov_b64 exec, -1
            """)
        a("s_branch ka_done")
    a.label("ka_done")
    if opt.get("stamp"):
        stamp(6)
        a("s_waitcnt vmcnt(0)")
        stamp(7)
        a(f"""
        s_waitcnt lgkmcnt(0)
        s_lshl_b32 s{sT}, s2, 3
        s_add_u32 s{sT}, s{sT}, s{sW}
        s_lshl_b32 s{sT}, s{sT}, 5
        s_add_u32 s{sT}, s{sT}, {WS_DBG}
        v_mov_b32 v1, 0
        """)
        for i in range(8): a(f"v_mov_b32 v{4+i}, s{60+2*i}")
        a(f"""
        buffer_store_dwordx4 v[4:7], v1, s[{WS}:{WS+3}], s{sT} offen
        buffer_store_dwordx4 v[8:11], v1, s[{WS}:{WS+3}], s{sT} offen offset:16
        """)
    if opt.get("dstamp"):
        a(f"""
        s_cmp_lg_u32 s2, 100
        s_cbranch_scc1 ka_exit
        s_cmp_lg_u32 s{sW}, 0
        s_cbranch_scc1 ka_exit
        s_load_dwordx2 s[4:5], s[0:1], 80
        s_waitcnt lgkmcnt(0)
        s_mov_b32 s6, 256
        s_mov_b32 s7, 0x00020000
        buffer_store_dword v4, v1, s[4:7], 0 offen
        buffer_store_dword v6, v1, s[4:7], 0 offen offset:4
        buffer_store_dword v11, v1, s[4:7], 0 offen offset:8
        """)
    a.label("ka_exit")
    a("s_endpgm")
```

```python
from asmlib import *
from layout import *
from ka import srd

KB_LDS = 163840
L_STG = 135168
L_OXH = L_STG
L_OXL = 159744
L_LNS = 162816
L_RED = 98304
FR = 114688
SPIN = 1 << 15

STAMPS = {"w0-3": ["start", "B1", "attn", "B4", "st1", "B5", "st2", "B6", "stored", "acked", "BA", "seen", "BB", "T0", "end"],
          "w4-7": ["start", "B1", "B3", "rl", "rlseen", "B4", "attn", "B6", "BA", "BC", "seen0", "seen6", "mm", "red", "end"]}

WS, X, OUT, RA, RB, RD = 28, 32, 36, 40, 44, 48
sW, sJ, sGRP, sMEM, sT, sT2, sT3, sO, sO2, sCNT, sMK, sMODE = 52, 53, 54, 55, 56, 57, 58, 59, 60, 61, 62, 98
vL, vL16, vT, vT2 = 1, 2, 3, 0

vQ, vK, vV, vP, vKA, vVA, vOXW, vIX, vS, vO, vC = 4, 8, 16, 32, 40, 43, 46, 47, 48, 80, 96

class VM:
    def __init__(self): self.n = 0; self.pos = {}
    def issue(self, key=None):
        self.n += 1
        if key is not None: self.pos[key] = self.n
    def cnt(self, key): return self.n - self.pos[key]

def ws(): return f"s[{WS}:{WS+3}]"

def gen_kb(a, name, opt):
    def stamp(i, wait=True, inner=False):
        if opt.get("astamp") and 7 <= i <= 13 and not inner: return
        if opt.get("pstamp") and 1 <= i <= 8 and not inner: return
        if opt.get("stamp"):
            a(f"{'s_memtime' if opt.get('cyc') else 's_memrealtime'} s[{64+2*i}:{65+2*i}]")
            if wait: a("s_waitcnt lgkmcnt(0)")
    def mf32(d, x, y, c): a(f"v_mfma_f32_32x32x16_bf16 {vr(d,16)}, {vr(x,4)}, {vr(y,4)}, {c if isinstance(c,str) else vr(c,16)}")

    def sm32(x, y): a(f"v_smfmac_f32_32x32x32_bf16 {vr(vO,16)}, {vr(x,4)}, {vr(y,8)}, v{vIX}")
    def attention(tag, hooks, extras):
        lg = VM()
        def rd_k(t):
            if t >= 64: return
            b, o = divmod(t, 30)
            a(f"ds_read_b128 {vr(vK+4*(t&1),4)}, v{vKA+b} offset:{o*KVT}"); lg.issue(("k", t))
        def rd_v(t, u):
            if t >= 64: return
            b, o = divmod(t, 30)
            a(f"ds_read_b128 {vr(vV+8*(t&1)+4*u,4)}, v{vVA+b} offset:{o*KVT+u*VH}"); lg.issue(("v", t, u))
        rd_k(0); rd_k(1); rd_v(0, 0); rd_v(0, 1); rd_v(1, 0)
        a(f"s_waitcnt lgkmcnt({lg.cnt(('k', 0))})")
        mf32(vS, vK, vQ, "0")
        rd_k(2)
        a("s_nop 10")
        for t in range(64):
            S, N = vS + 16*(t & 1), vS + 16*((t+1) & 1)
            ex = list(extras.get(t, []))
            def e(*idx):
                for i in idx: a(f"v_exp_f32 v{S+i}, v{S+i}")
            def extra():
                if ex: ex.pop(0)()
            if opt.get("astamp") and t and t % 8 == 0: stamp(6 + t//8, wait=False, inner=True)
            if t in hooks: hooks[t]()
            e(0, 1)
            need = [("v", t, 0)] + ([("v", t-1, 1)] if t else []) + ([("k", t+1)] if t < 63 else [])
            a(f"s_waitcnt lgkmcnt({min(lg.cnt(k) for k in need)})")
            if t > 0: sm32(vV + 8*((t-1) & 1) + 4, N + 8)
            rd_v(t + 1, 1); extra()
            e(2, 3, 4)
            if t < 63: mf32(N, vK + 4*((t+1) & 1), vQ, "0")
            rd_k(t + 3); extra()
            e(5, 6, 7, 8, 9)
            sm32(vV + 8*(t & 1), S)
            rd_v(t + 2, 0); extra()
            e(10, 11, 12, 13, 14, 15)
            assert not ex
        a("s_waitcnt lgkmcnt(0)\ns_nop 0")
        sm32(vV + 8 + 4, vS + 16 + 8)
        a(f"""
        s_mov_b32 s{sT}, {f32(2.0**-64)}
        s_mov_b32 s{sT2}, {f32(2.0**64)}
        s_nop 11
        v_cmp_lt_f32 vcc, s{sT}, v{vO+8}
        v_cmp_gt_f32 s[96:97], s{sT2}, v{vO+8}
        v_rcp_f32 v{vT}, v{vO+8}
        s_and_b64 vcc, vcc, s[96:97]
        s_cmp_eq_u64 vcc, -1
        s_cbranch_scc0 slow_{tag}
        """)
        a.label(f"norm_{tag}")
        for r in range(8): a(f"v_mul_f32 v{vO+r}, v{vO+r}, v{vT}")
        for r in range(4): a(f"v_cvt_pk_bf16_f32 v{vP+r}, v{vO+2*r}, v{vO+2*r+1}")
        a(f"ds_write_b128 v{vOXW}, {vr(vP,4)}\ns_waitcnt lgkmcnt(0)")

    def slow_path(tag):
        a.label(f"slow_{tag}")
        vM = vC
        a(f"v_mov_b32 v{vM}, 0xff800000\ns_mov_b32 s{sT}, {WS_KV}")
        a.label(f"slow1_{tag}")
        a(f"buffer_load_dwordx4 {vr(vK,4)}, v{vKA}, {ws()}, s{sT} offen\ns_waitcnt vmcnt(0)")
        mf32(vS, vK, vQ, "0")
        a(f"s_add_u32 s{sT}, s{sT}, {KVT}\ns_nop 11")
        for r in range(8): a(f"v_max3_f32 v{vM}, v{vM}, v{vS+2*r}, v{vS+2*r+1}")
        a(f"""
        s_cmp_lg_u32 s{sT}, {WS_KV + 64*KVT}
        s_cbranch_scc1 slow1_{tag}
        v_mov_b32 v{vM+1}, v{vM}
        s_nop 1
        v_permlane32_swap_b32 v{vM}, v{vM+1}
        v_max_f32 v{vM}, v{vM}, v{vM+1}
        v_sub_f32 v{vM}, 0, v{vM}
        """)
        for r in range(1, 16): a(f"v_mov_b32 v{vM+r}, v{vM}")
        for r in range(16): a(f"v_mov_b32 v{vO+r}, 0")
        a(f"s_mov_b32 s{sT}, {WS_KV}")
        a.label(f"slow2_{tag}")
        a(f"""
        buffer_load_dwordx4 {vr(vK,4)}, v{vKA}, {ws()}, s{sT} offen
        buffer_load_dwordx4 {vr(vV,4)}, v{vVA}, {ws()}, s{sT} offen
        buffer_load_dwordx4 {vr(vV+4,4)}, v{vVA}, {ws()}, s{sT} offen offset:{VH}
        s_waitcnt vmcnt(0)
        """)
        mf32(vS, vK, vQ, vM)
        a(f"s_add_u32 s{sT}, s{sT}, {KVT}\ns_nop 11")
        for r in range(16): a(f"v_exp_f32 v{vS+r}, v{vS+r}")
        a("s_nop 1")
        sm32(vV, vS)
        sm32(vV + 4, vS + 8)
        a(f"""
        s_nop 15
        s_cmp_lg_u32 s{sT}, {WS_KV + 64*KVT}
        s_cbranch_scc1 slow2_{tag}
        v_rcp_f32 v{vT}, v{vO+8}
        s_branch norm_{tag}
        """)

    def poll(tag, vdst, vaddr, soff, need, mask, sleep=0):
        a(f"s_mov_b32 s{sCNT}, {SPIN}")
        a.label(f"poll_{tag}")
        a(f"v_cmp_le_u32 vcc, {need}, v{vdst}\ns_sub_u32 s{sCNT}, s{sCNT}, 1\ns_cbranch_scc1 done_{tag}")
        if mask is None:
            a("s_cmp_eq_u64 vcc, -1")
        else:
            a(f"s_and_b32 s{sT}, vcc_lo, s{mask}\ns_cmp_eq_u32 s{sT}, s{mask}")
        a(f"s_cbranch_scc1 done_{tag}")
        if sleep: a(f"s_sleep {sleep}")
        a(f"buffer_load_dword v{vdst}, v{vaddr}, {ws()}, s{soff} offen sc1\ns_waitcnt vmcnt(0)")
        a(f"s_branch poll_{tag}")
        a.label(f"done_{tag}")

    a.label(name)
    a(f"""
    s_cmp_ge_u32 s2, 256
    s_cbranch_scc1 kb_exit
    s_load_dwordx2 s[24:25], s[0:1], 88
    s_load_dwordx16 s[4:19], s[0:1], 0
    s_load_dwordx4 s[20:23], s[0:1], 64
    """)
    stamp(0, wait=False)
    a(f"""
    v_lshrrev_b32 v{vT}, 6, v0
    v_and_b32 v{vL}, 63, v0
    s_lshr_b32 s{sT}, s2, 3
    v_readfirstlane_b32 s{sW}, v{vT}
    s_and_b32 s{sMEM}, s{sT}, 15
    s_lshr_b32 s{sT}, s{sT}, 4
    s_and_b32 s{sGRP}, s2, 7
    s_lshl_b32 s{sGRP}, s{sGRP}, 1
    s_add_u32 s{sGRP}, s{sGRP}, s{sT}
    v_lshlrev_b32 v{vL16}, 4, v{vL}
    s_and_b32 s{sJ}, s{sW}, 3
    s_lshl_b32 s{sT}, s{sGRP}, 4
    s_add_u32 s{sT}, s{sT}, s{sMEM}
    s_lshl_b32 s{sT}, s{sT}, 3
    s_add_u32 s{sT}, s{sT}, s{sW}
    s_lshl_b32 s{sT}, s{sT}, 10
    s_lshl_b32 s{sO}, s{sJ}, 10
    s_waitcnt lgkmcnt(0)
    """)
    srd(a, WS, 24, WS_SIZE)
    a(f"""
    buffer_load_dwordx4 {vr(vQ,4)}, v{vL16}, {ws()}, s{sT} offen
    s_cmp_ge_u32 s{sW}, 4
    s_cbranch_scc1 kb_grpb
    """)
    def attn_addrs(oxbase):
        a(f"""
        v_mov_b32 v{vKA}, v{vL16}
        v_add_u32 v{vKA+1}, {30*KVT}, v{vL16}
        v_add_u32 v{vKA+2}, {60*KVT}, v{vL16}
        v_lshrrev_b32 v{vT}, 5, v{vL}
        v_and_b32 v{vVA}, 15, v{vL}
        v_lshlrev_b32 v{vVA}, 4, v{vVA}
        v_lshl_add_u32 v{vVA}, v{vT}, 8, v{vVA}
        s_mov_b32 exec_lo, 0xffff0000
        s_mov_b32 exec_hi, 0xffff0000
        v_mov_b32 v{vVA}, 0x210
        s_mov_b32 exec_lo, 0x00110000
        s_mov_b32 exec_hi, 0x00110000
        v_mov_b32 v{vVA}, 0x200
        s_mov_b64 exec, -1
        v_mov_b32 v{vIX}, 0xdddddddd
        v_add_u32 v{vVA}, 0x400, v{vVA}
        v_add_u32 v{vVA+1}, {30*KVT}, v{vVA}
        v_add_u32 v{vVA+2}, {60*KVT}, v{vVA}
        s_lshl_b32 s{sT}, s{sJ}, 10
        s_add_u32 s{sT}, s{sT}, {oxbase}
        v_lshl_add_u32 v{vOXW}, v{vT}, 7, s{sT}
        v_bfe_u32 v{vT}, v{vL}, 3, 2
        v_lshl_add_u32 v{vOXW}, v{vT}, 8, v{vOXW}
        v_and_b32 v{vT}, 7, v{vL}
        v_lshl_add_u32 v{vOXW}, v{vT}, 4, v{vOXW}
        """)
        for r in range(16): a(f"v_mov_b32 v{vO+r}, 0")
    R1, R2 = opt.get("r1", 3), opt.get("r2", 10)
    def first_tile_needing(nbytes):
        for t in range(64):
            if (t + 3)*KVT + 1024 > nbytes: return t
    R3 = 22
    TB2, TB3, TB4 = first_tile_needing(R1*4096), first_tile_needing(R2*4096), first_tile_needing(R3*4096)

    a(f"s_setprio 2\ns_lshl_b32 s{sO}, s{sJ}, 17\ns_add_u32 s{sO}, s{sO}, {WS_WO}")
    attn_addrs(L_OXL)
    a("s_waitcnt vmcnt(0)\ns_barrier")
    stamp(1)
    vAc, vB, vOXR, vHO, vLW, vLR, vFO, vWR = 8, 40, 52, 53, 54, 55, 56, 59
    wreg = lambda f: 64 + 4*((f + 12) % 48)
    vm = VM()
    def wo_load(f):
        if f and f % 4 == 0: a(f"s_add_u32 s{sO}, s{sO}, 0x1000")
        a(f"buffer_load_dwordx4 {vr(wreg(f),4)}, v{vL16}, {ws()}, s{sO} offen offset:{(f%4)*1024}"); vm.issue(f)
    TRY = opt.get("try", 22)
    bar = lambda: a("s_barrier")
    extras = {TRY + i: [lambda f=2*i: wo_load(f), lambda f=2*i+1: wo_load(f)] for i in range(18)}
    attention("a", {TB2: bar, TB3: bar, TB4: bar}, extras)
    stamp(2)
    a(f"s_setprio {opt.get('hprio', 2)}\ns_barrier")
    stamp(3)
    srd(a, X, 4, 2048*1024)
    a(f"""
    v_and_b32 v{vT}, 7, v{vL}
    v_lshrrev_b32 v{vT2}, 4, v{vL}
    v_lshlrev_b32 v60, 10, v{vT}
    v_lshl_add_u32 v60, v{vT2}, 6, v60
    s_lshl_b32 s{sT}, s{sGRP}, 4
    s_add_u32 s{sT}, s{sT}, s{sMEM}
    s_lshl_b32 s{sT}, s{sT}, 13
    s_lshl_b32 s{sT2}, s{sJ}, 8
    s_add_u32 s{sT}, s{sT}, s{sT2}
    """)
    vX = wreg(44)
    for i in range(4): a(f"buffer_load_dwordx4 {vr(vX+4*i,4)}, v60, s[{X}:{X+3}], s{sT} offen offset:{16*i}")
    a(f"""
    v_and_b32 v61, 15, v{vL}
    v_lshlrev_b32 v61, 2, v61
    s_lshl_b32 s{sT}, s{sGRP}, 7
    s_add_u32 s{sT}, s{sT}, {WS_FLAG + FL_XID}
    buffer_load_dword v62, v61, {ws()}, s{sT} offen sc1
    """)
    for f in range(36, 44): wo_load(f)
    a(f"""
    v_lshlrev_b32 v{vLR}, 4, v{vT}
    v_lshl_add_u32 v{vOXR}, v{vT2}, 7, v{vLR}
    v_add_u32 v{vOXR}, {L_OXH}, v{vOXR}
    v_lshrrev_b32 v{vT2}, 3, v{vL}
    v_lshl_add_u32 v{vHO}, v{vT2}, 10, v{vLR}
    v_add_u32 v{vLR}, {L_LNS}, v{vLR}
    v_lshrrev_b32 v{vT2}, 5, v{vL}
    v_lshl_add_u32 v{vLW}, v{vT2}, 7, v{vLR}
    s_lshl_b32 s{sT}, s{sJ}, 2
    v_add_u32 v{vLW}, s{sT}, v{vLW}
    s_lshl_b32 s{sCNT}, s{sJ}, 14
    s_add_u32 s{sCNT}, s{sCNT}, 0x8000
    v_add_u32 v{vWR}, s{sCNT}, v{vL16}
    s_getreg_b32 s{sT}, hwreg(HW_REG_XCC_ID, 0, 4)
    s_add_u32 s{sT}, s{sT}, 1
    s_waitcnt vmcnt(8)
    v_cmp_eq_u32 vcc, s{sT}, v62
    v_mov_b32 v{vFO}, 0x40000000
    v_mov_b32 v{vFO+1}, 0x40000000
    s_cmp_eq_u64 vcc, -1
    s_cselect_b32 s{sMODE}, {0 if opt.get("slowmode") else 1}, 0
    s_cmp_eq_u32 s{sMODE}, 1
    s_cselect_b32 s{sT}, 0, 0x40000000
    s_cselect_b32 s{sT2}, 0x40000000, 0
    v_writelane_b32 v{vFO}, s{sT}, 0
    v_writelane_b32 v{vFO+1}, s{sT2}, 0
    """)
    for i in range(16):
        a(f"v_lshlrev_b32 v{vAc+2*i}, 16, v{vX+i}\nv_and_b32 v{vAc+2*i+1}, 0xffff0000, v{vX+i}")
    for f in range(44, 48): wo_load(f)
    a(f"""
    s_mul_i32 s{sMK}, s{sMEM}, {7*32768}
    s_and_b32 s{sT2}, s{sGRP}, 1
    s_lshl_b32 s{sT2}, s{sT2}, 2
    s_add_u32 s{sT2}, s{sT2}, s{sJ}
    s_mul_i32 s{sT2}, s{sT2}, {24*1024}
    s_add_u32 s{sMK}, s{sMK}, s{sT2}
    s_add_u32 s{sMK}, s{sMK}, {WS_WGU + 32768}
    v_mov_b32 v63, 0x40000000
    s_mov_b64 exec, 0xffff
    v_lshlrev_b32 v63, 7, v{vL}
    s_mov_b64 exec, -1
    """)
    def oproj(k0):
        lg = VM()
        def ox_read(ks):
            off = (L_OXL - L_OXH) + ks*512 if ks < 8 else (ks - 8)*512
            a(f"ds_read_b128 {vr(vB+4*(ks%3),4)}, v{vOXR} offset:{off}"); lg.issue(("o", ks))
        ox_read(k0); ox_read(k0 + 1)
        for ks in range(k0, k0 + 8):
            a(f"s_waitcnt lgkmcnt({lg.cnt(('o', ks))})" + (f" vmcnt({vm.cnt(8*ks+7)})" if ks < 8 else ""))
            for jt in range(8):
                f = 8*ks + jt
                a(f"v_mfma_f32_16x16x32_bf16 {vr(vAc+4*jt,4)}, {vr(wreg(f),4)}, {vr(vB+4*(ks%3),4)}, {vr(vAc+4*jt,4)}")
                if jt == 0 and ks + 2 < k0 + 8: ox_read(ks + 2)
                if f + 48 < 112:
                    wo_load(f + 48)
                    if f % 5 == 2 and f//5 < 12:
                        a(f"buffer_load_dword v62, v63, {ws()}, s{sMK} offen offset:{(f//5 & 1)*2048} sc1"); vm.issue()
                        if f//5 & 1: a(f"s_add_u32 s{sMK}, s{sMK}, 0x1000")
                elif 72 <= f < 104 and f & 1:
                    g = 112 + (f - 72)//2
                    a(f"ds_read_b128 {vr(wreg(g),4)}, v{vWR} offset:{(g-112)*1024}"); lg.issue()
    oproj(0)
    stamp(4)
    slot = [0, 3, 1, 2, 4, 0, 3]
    sG = 63
    def gu_base():
        a(f"""
        s_mul_i32 s{sG}, s{sMEM}, {7*32768}
        s_lshl_b32 s{sT3}, s{sJ}, 13
        s_add_u32 s{sG}, s{sG}, s{sT3}
        s_add_u32 s{sG}, s{sG}, {WS_WGU}
        """)
    def gu_dma(t):
        for i in range(8):
            if i % 4 == 0:
                a(f"s_add_u32 m0, s{sT3}, {slot[t]*32768 + (i//4)*4096}\ns_add_u32 s{sT}, s{sG}, {t*32768 + (i//4)*4096}")
            a(f"buffer_load_dwordx4 v{vL16}, {ws()}, s{sT} offen offset:{(i%4)*1024} sc1 lds")
    sHN, sFL = sO2, 27
    a(f"""
    s_lshl_b32 s{sT}, s{sGRP}, 2
    s_lshr_b32 s{sT2}, s{sMEM}, 2
    s_add_u32 s{sT}, s{sT}, s{sT2}
    s_lshl_b32 s{sFL}, s{sT}, 8
    s_lshl_b32 s{sHN}, s{sT}, 15
    s_lshl_b32 s{sT}, s{sJ}, 13
    s_add_u32 s{sHN}, s{sHN}, s{sT}
    s_and_b32 s{sT2}, s{sMEM}, 3
    s_lshl_b32 s{sT}, s{sT2}, 7
    s_add_u32 s{sHN}, s{sHN}, s{sT}
    s_add_u32 s{sHN}, s{sHN}, {WS_HN}
    s_lshl_b32 s{sT2}, s{sT2}, 2
    s_add_u32 s{sT2}, s{sT2}, s{sJ}
    s_lshl_b32 s{sT2}, s{sT2}, 2
    s_add_u32 s{sFL}, s{sFL}, s{sT2}
    s_add_u32 s{sFL}, s{sFL}, {WS_FLAG + FL_HN}
    s_add_u32 s{sT}, s{sFL}, {FL_ACT - FL_HN}
    buffer_load_dword v62, v{vHO}, {ws()}, s{sHN} offen sc1
    buffer_load_dword v62, v{vHO}, {ws()}, s{sHN} offen offset:512 sc1
    buffer_load_dword v62, v{vFO}, {ws()}, s{sFL} offen sc1
    buffer_load_dword v62, v{vFO}, {ws()}, s{sT} offen sc1
    """)
    AL2 = opt.get("actl2", 2)
    if AL2:
        a(f"""
        s_lshl_b32 s{sT}, s{sGRP}, 2
        s_add_u32 s{sT}, s{sT}, s{sJ}
        s_mul_i32 s{sT}, s{sT}, {FR}
        s_mul_i32 s{sT2}, s{sMEM}, {7*1024}
        s_add_u32 s{sT}, s{sT}, s{sT2}
        s_add_u32 s{sT}, s{sT}, {WS_ACT + (7 - AL2)*1024}
        v_lshlrev_b32 v63, 7, v{vL}
        s_mov_b32 exec_lo, {((1 << 8*AL2) - 1) & 0xffffffff:#x}
        s_mov_b32 exec_hi, {((1 << 8*AL2) - 1) >> 32:#x}
        buffer_load_dword v62, v63, {ws()}, s{sT} offen sc1
        s_mov_b64 exec, -1
        """)
    gu_base()
    a("s_barrier")
    for i in range(16):
        if i % 4 == 0: a(f"s_add_u32 m0, s{sCNT}, {i*1024}\ns_add_u32 s{sO}, s{sO}, 0x1000")
        a(f"buffer_load_dwordx4 v{vL16}, {ws()}, s{sO} offen offset:{(i%4)*1024} lds")
    gu_dma(0)
    a("s_waitcnt vmcnt(0)\ns_setprio 3\ns_barrier")
    stamp(5)
    oproj(8)
    stamp(6)
    a("s_nop 2\ns_mov_b32 exec_lo, 0xff00ff00\ns_mov_b32 exec_hi, 0xff00ff00")
    for i in range(16): a(f"v_mov_b32 v{vAc+i}, v{vAc+16+i}")
    a("s_mov_b64 exec, -1")
    s0, s1, q0, q1, vH, vN = 64, 65, 66, 67, 120, 80
    a(f"v_add_f32 v{s0}, v{vAc}, v{vAc+2}\nv_add_f32 v{s1}, v{vAc+1}, v{vAc+3}")
    a(f"v_mul_f32 v{q0}, v{vAc}, v{vAc}\nv_mul_f32 v{q1}, v{vAc+1}, v{vAc+1}")
    for i in range(2, 16):
        if i >= 4: a(f"v_add_f32 v{s0+(i&1)}, v{s0+(i&1)}, v{vAc+i}")
        a(f"v_fmac_f32 v{q0+(i&1)}, v{vAc+i}, v{vAc+i}")
    a(f"""
    v_add_f32 v{s0}, v{s0}, v{s1}
    v_add_f32 v{q0}, v{q0}, v{q1}
    v_cvt_pk_bf16_f32 v{vH}, v{vAc}, v{vAc+1}
    v_cvt_pk_bf16_f32 v{vH+1}, v{vAc+2}, v{vAc+3}
    v_permlane32_swap_b32 v{s0}, v{q0}
    v_add_f32 v{s0}, v{s0}, v{q0}
    v_cvt_pk_bf16_f32 v{vH+2}, v{vAc+4}, v{vAc+5}
    v_cvt_pk_bf16_f32 v{vH+3}, v{vAc+6}, v{vAc+7}
    v_add_f32_dpp v{s0}, v{s0}, v{s0} row_ror:8 row_mask:0xf bank_mask:0xf
    v_mov_b32 v{s1}, v{s0}
    v_cvt_pk_bf16_f32 v{vH+4}, v{vAc+8}, v{vAc+9}
    v_cvt_pk_bf16_f32 v{vH+5}, v{vAc+10}, v{vAc+11}
    v_permlane16_swap_b32 v{s0}, v{s1}
    v_add_f32 v{s0}, v{s0}, v{s1}
    ds_write_b32 v{vLW}, v{s0}
    v_cvt_pk_bf16_f32 v{vH+6}, v{vAc+12}, v{vAc+13}
    v_cvt_pk_bf16_f32 v{vH+7}, v{vAc+14}, v{vAc+15}
    s_waitcnt lgkmcnt(0)
    s_barrier
    """)
    stamp(7)
    a(f"""
    ds_read_b128 v[64:67], v{vLR}
    ds_read_b128 v[68:71], v{vLR} offset:128
    s_add_u32 s26, s{sHN}, {WS_H - WS_HN}
    v_mov_b32 v58, 1
    s_waitcnt lgkmcnt(0)
    v_add_f32 v64, v64, v65
    v_add_f32 v68, v68, v69
    v_add_f32 v66, v66, v67
    v_add_f32 v70, v70, v71
    v_add_f32 v64, v64, v66
    v_add_f32 v68, v68, v70
    v_mul_f32 v64, {f32(1/512)}, v64
    v_mul_f32 v68, {f32(1/512)}, v68
    v_fma_f32 v68, -v64, v64, v68
    v_max_f32 v68, 0, v68
    v_add_f32 v68, {f32(1e-5)}, v68
    v_rsq_f32 v68, v68
    s_nop 0
    v_mul_f32 v68, {f32(LOG2E)}, v68
    v_mul_f32 v64, v64, v68
    """)
    for i in range(16): a(f"v_fma_f32 v{vAc+i}, v{vAc+i}, v68, -v64")
    a(f"s_cmp_eq_u32 s{sMODE}, 1")
    for i in range(8): a(f"v_cvt_pk_bf16_f32 v{vN+i}, v{vAc+2*i}, v{vAc+2*i+1}")
    a("s_cbranch_scc0 kb_hn_far")
    def hn_store(fl):
        for h in range(2): a(f"buffer_store_dwordx4 {vr(vN+4*h,4)}, v{vHO}, {ws()}, s{sHN} offen offset:{512*h}{fl}")
    hn_store("")
    a.label("kb_hn_back")
    stamp(8)
    vPL, vPA, vA0, vAcc, vAR, vE, vPk, vHN = 4, 5, 6, 16, 64, 96, 112, 128
    sAC, sAF = sO, sMK
    a(f"""
    s_lshl_b32 s{sT}, s{sGRP}, 2
    s_add_u32 s{sT}, s{sT}, s{sJ}
    s_mul_i32 s{sAC}, s{sT}, {FR}
    s_mul_i32 s{sT2}, s{sMEM}, {7*1024}
    s_add_u32 s{sAC}, s{sAC}, s{sT2}
    s_add_u32 s{sAC}, s{sAC}, {WS_ACT}
    s_lshl_b32 s{sG}, s{sT}, 15
    s_add_u32 s{sG}, s{sG}, {WS_HN}
    s_lshl_b32 s{sT}, s{sT}, 8
    s_lshl_b32 s{sT2}, s{sMEM}, 2
    s_add_u32 s{sAF}, s{sT}, s{sT2}
    s_add_u32 s{sAF}, s{sAF}, {WS_FLAG + FL_ACT}
    s_add_u32 s{sT2}, s{sT}, {WS_FLAG + FL_HN}
    v_and_b32 v{vPA}, 15, v{vL}
    v_lshlrev_b32 v{vPA}, 2, v{vPA}
    v_mov_b32 v{vPL}, 0
    v_add_u32 v{vA0+1}, 0x10000, v{vL16}
    v_mov_b32 v9, v{vFO}
    v_mov_b32 v10, v{vFO+1}
    v_mov_b32 v13, v{vHO}
    s_cmp_eq_u32 s{sMODE}, 1
    s_cselect_b32 s{sT}, 0, 0x40000000
    s_cselect_b32 s{sCNT}, 0x40000000, 0
    v_add_u32 v14, s{sT}, v{vL16}
    v_add_u32 v15, s{sCNT}, v{vL16}
    v_add_u32 v{vA0+2}, 0x20000, v{vL16}
    s_waitcnt vmcnt(0)
    """)
    stamp(9)
    vFO2, vFV, vHO2 = 9, 11, 13
    def flag(v, soff):
        return f"buffer_store_dword v{v}, v{vFO2}, {ws()}, s{soff} offen\nbuffer_store_dword v{v}, v{vFO2+1}, {ws()}, s{soff} offen sc1"
    a(flag(58, sFL))
    a("s_barrier")
    stamp(10)
    poll("hn", vPL, vPA, sT2, 1, None)
    stamp(11)
    vm = VM()
    def hn_load(s):
        if s and s % 4 == 0: a(f"s_add_u32 s{sG}, s{sG}, 0x1000")
        a(f"buffer_load_dwordx4 {vr(vHN+4*s,4)}, v{vL16}, {ws()}, s{sG} offen offset:{(s%4)*1024} sc1"); vm.issue(("hn", s))
    HL = opt.get("hl", 14)
    for s in range(HL): hn_load(s)
    seq = [(t, s) for s in range(32) for t in (0, 1)] + [(t, s) for t in range(2, 7) for s in range(32)]
    LA = 7
    def a_read(n):
        t, s = seq[n]
        base = {0: vL16, 1: vA0+1, 2: vA0+2}[slot[t] >> 1]
        a(f"ds_read_b128 {vr(vAR+4*(n%8),4)}, v{base} offset:{(slot[t]&1)*32768 + s*1024}")
    sLG = sT3
    a(f"s_mov_b32 s{sLG}, {f32(LOG2E)}")
    def epilogue(t):
        A, pk = vAcc + 16*(t % 3), vPk + 4*(t & 1)
        ops = []
        for r in range(8): ops.append(f"v_exp_f32 v{vE+r}, -v{A+r}")
        for r in range(8): ops.append(f"v_fma_f32 v{vE+r}, v{vE+r}, s{sLG}, s{sLG}")
        for r in range(8): ops.append(f"v_rcp_f32 v{vE+r}, v{vE+r}")
        for r in range(8): ops.append(f"v_mul_f32 v{vE+r}, v{vE+r}, v{A+8+r}")
        for r in range(4): ops.append(f"v_cvt_pk_bf16_f32 v{pk+r}, v{vE+2*r}, v{vE+2*r+1}")
        return ops
    def act_store(t):
        if t == 4: a(f"s_add_u32 s{sAC}, s{sAC}, 0x1000")
        for va, fl in (((14, ""), (15, " sc1")) if t >= 7 - AL2 else ((vL16, " sc1"),)):
            a(f"buffer_store_dwordx4 {vr(vPk+4*(t&1),4)}, v{va}, {ws()}, s{sAC} offen offset:{(t%4)*1024}{fl}"); vm.issue(("st", t))
    def publish(n):
        a(f"s_waitcnt vmcnt({vm.cnt(('st', n-1))})\n" + flag(vFV + (n & 1), sAF)); vm.issue(); vm.issue()
    cost = lambda op: 8 if op.startswith(("v_exp", "v_rcp")) else 4
    for n in range(LA): a_read(n)
    pend = []
    PUB = {(4, 2): 2, (4, 30): 3, (5, 30): 4, (6, 30): 5} if AL2 < 7 else {(3, 27): 2, (4, 3): 3, (5, 3): 4, (6, 3): 5}
    for n, (t, s) in enumerate(seq):
        if t >= 2 and s == 4:
            for te in ([0, 1] if t == 2 else [t - 1]):
                pend += [("v", o) for o in epilogue(te)] + [("m", te)]
        w = f"lgkmcnt({min(LA - 1, len(seq) - 1 - n)})"
        if n < 64 and t == 0: w += f" vmcnt({vm.cnt(('hn', s))})"
        a("s_waitcnt " + w)
        if opt.get("pstamp") and ((s == 0 and t != 1) or (t, s) in ((0, 8), (0, 16))): stamp(1 + s//8 if t == 0 else t + 2, wait=False, inner=True)
        A = vAcc + 16*(t % 3)
        mf32(A, vAR + 4*(n % 8), vHN + 4*s, "0" if s == 0 else A)
        if n + LA < len(seq):
            if seq[n + LA] == (4, 0): a(f"s_waitcnt vmcnt({vm.cnt('h')})")
            if seq[n + LA] in ((4, 0), (5, 0)): a("s_barrier")
            a_read(n + LA)
        if t == 0 and s + HL < 32: hn_load(s + HL)
        if t == 1 and s in (20, 21):
            a(f"buffer_store_dwordx4 {vr(vH+4*(s-20),4)}, v{vHO2}, {ws()}, s26 offen offset:{512*(s-20)} sc1"); vm.issue("h")
        if (t, s) == (1, 31):
            a("s_barrier"); stamp(12, wait=False)
        if (t, s + 1) in PUB: a(f"v_mov_b32 v{vFV + (PUB[(t, s+1)] & 1)}, {PUB[(t, s+1)]}")
        if (t, s) in PUB: publish(PUB[(t, s)])
        elif pend and pend[0][0] == "m": act_store(pend.pop(0)[1])
        else:
            budget = 16
            while pend and pend[0][0] == "v" and budget >= cost(pend[0][1]):
                budget -= cost(pend[0][1]); a(pend.pop(0)[1])
        if s == 31: assert not pend or t < 2, (t, len(pend))
    stamp(13)
    a(f"v_mov_b32 v{vFV}, 6\ns_nop 10")
    for o in epilogue(6): a(o)
    act_store(6)
    publish(6)
    a(f"v_mov_b32 v{vFV+1}, 7")
    publish(7)
    if opt.get("wb"): a(f"s_cmp_lg_u32 s{sJ}, 0\ns_cbranch_scc1 kb_done\ns_waitcnt vmcnt(0)\nbuffer_wbl2 sc1")
    a("s_branch kb_done")
    a.label("kb_hn_far")
    hn_store(" sc1")
    a("s_branch kb_hn_back")
    slow_path("a")

    a.label("kb_grpb")
    a(f"s_setprio 3\ns_add_u32 s{sO2}, s{sO}, {WS_KV}")
    def kv_round(r):
        a(f"s_add_u32 m0, s{sO}, {r*4096}\ns_add_u32 s{sT}, s{sO2}, {r*4096}")
        a(f"buffer_load_dwordx4 v{vL16}, {ws()}, s{sT} offen lds")
    N1 = 12
    for r in range(N1): kv_round(r)
    vSA, vSD, vTR, vTD, vRO = 100, 101, 102, 103, 104
    sST, sD1, sD2, sS1, sS2 = 63, 26, 27, sT3, sMK
    srd(a, RA, 16, 512*3584); srd(a, RB, 18, 512*3584); srd(a, RD, 20, 1792*1024)
    a(f"""
    s_mul_i32 s{sST}, s{sJ}, 6144
    s_add_u32 s{sST}, s{sST}, {L_STG}
    v_lshrrev_b32 v{vT}, 3, v{vL}
    v_and_b32 v{vT2}, 7, v{vL}
    v_mul_u32_u24 v{vSA}, 3584, v{vT}
    v_lshl_add_u32 v{vSA}, v{vT2}, 4, v{vSA}
    v_lshlrev_b32 v{vSD}, 10, v{vT}
    v_lshl_add_u32 v{vSD}, v{vT2}, 4, v{vSD}
    s_lshl_b32 s{sCNT}, s2, 2
    s_add_u32 s{sCNT}, s{sCNT}, s{sJ}
    s_and_b32 s{sT2}, s{sCNT}, 31
    s_lshr_b32 s{sT}, s{sCNT}, 5
    s_lshl_b32 s{sD1}, s{sT}, 17
    s_lshl_b32 s{sS1}, s{sT}, 7
    s_lshl_b32 s{sT}, s{sT2}, 10
    s_add_u32 s{sD1}, s{sD1}, s{sT}
    s_add_u32 s{sD1}, s{sD1}, {WS_WGU}
    s_mul_i32 s{sT2}, s{sT2}, {16*3584}
    s_add_u32 s{sS1}, s{sS1}, s{sT2}
    s_and_b32 s{sT2}, s{sCNT}, 7
    s_lshr_b32 s{sT}, s{sCNT}, 3
    s_mul_i32 s{sD2}, s{sT2}, {2*FR}
    s_lshl_b32 s{sS2}, s{sT2}, 7
    s_lshl_b32 s{sT2}, s{sT}, 10
    s_add_u32 s{sD2}, s{sD2}, s{sT2}
    s_add_u32 s{sD2}, s{sD2}, {WS_WD}
    s_lshl_b32 s{sT}, s{sT}, 14
    s_add_u32 s{sS2}, s{sS2}, s{sT}
    v_bfe_u32 v{vT}, v{vL}, 2, 2
    v_lshrrev_b32 v{vT2}, 5, v{vL}
    v_lshl_add_u32 v{vT}, v{vT2}, 3, v{vT}
    v_lshl_add_u32 v{vTR}, v{vT}, 7, s{sST}
    v_bfe_u32 v{vT}, v{vL}, 1, 1
    v_lshl_add_u32 v{vTR}, v{vT}, 3, v{vTR}
    v_bfe_u32 v{vT}, v{vL}, 4, 1
    v_lshl_add_u32 v{vTD}, v{vT}, 4, v{vTR}
    v_lshl_add_u32 v{vTR}, v{vT}, 11, v{vTR}
    v_and_b32 v{vT}, 1, v{vL}
    v_lshl_add_u32 v{vTR}, v{vT}, 4, v{vTR}
    v_lshl_add_u32 v{vTD}, v{vT}, 5, v{vTD}
    """)
    attn_addrs(L_OXH)
    a(f"s_waitcnt vmcnt({N1 - R1})\ns_barrier")
    stamp(1)
    for r in range(N1, R3): kv_round(r)
    a(f"s_waitcnt vmcnt({R3 - R2})\ns_barrier")
    for i in range(6):
        r = (RA, RA, RB, RB, RD, RD)[i]
        base, step, va = (sS1, 8*3584, vSA) if i < 4 else (sS2, 8192, vSD)
        a(f"s_add_u32 m0, s{sST}, {i*1024}\ns_add_u32 s{sT}, s{base}, {step*(i&1)}\nbuffer_load_dwordx4 v{va}, s[{r}:{r+3}], s{sT} offen lds")
    for r in range(R3, 33): kv_round(r)
    a(f"s_waitcnt vmcnt({33 - R3})\ns_cmp_ge_u32 s2, 224\ns_cbranch_scc1 kb_rl_done")
    for b in range(6):
        for e in range(2):
            va, off = (vTR, e*512 + b*32) if b < 4 else (vTD, 4096 + e*512 + (b-4)*64)
            a(f"ds_read_b64_tr_b16 {vr(vRO+4*b+2*e,2)}, v{va} offset:{off}")
    for b in range(6):
        d = sD1 if b < 4 else sD2
        a(f"s_waitcnt lgkmcnt({10-2*b})")
        a(f"buffer_store_dwordx4 {vr(vRO+4*b,4)}, v{vL16}, {ws()}, s{d} offen sc1")
        if b not in (3, 5): a(f"s_add_u32 s{d}, s{d}, {0x8000 if b < 4 else FR}")
    a.label("kb_rl_done")
    a(f"""
    s_getreg_b32 s{sT2}, hwreg(HW_REG_XCC_ID, 0, 4)
    s_add_u32 s{sT2}, s{sT2}, 1
    s_lshl_b32 s{sT}, s{sGRP}, 5
    s_add_u32 s{sT}, s{sT}, s{sMEM}
    s_lshl_b32 s{sT}, s{sT}, 2
    s_add_u32 s{sT}, s{sT}, {WS_FLAG + FL_XID}
    v_mov_b32 v100, 1
    v_mov_b32 v101, 0
    v_mov_b32 v102, s{sT2}
    s_mov_b64 exec, 1
    s_cmp_lg_u32 s{sJ}, 0
    s_cbranch_scc1 kb_noxid
    buffer_store_dword v102, v101, {ws()}, s{sT} offen sc1
    """)
    a.label("kb_noxid")
    a("s_barrier"); stamp(2)
    a(f"""
    s_and_b32 s{sT}, s2, 31
    s_lshl_b32 s{sT}, s{sT}, 7
    s_add_u32 s{sT}, s{sT}, {WS_FLAG + FL_RL}
    s_waitcnt vmcnt(0)
    buffer_atomic_add v100, v101, {ws()}, s{sT} offen sc0 sc1
    v_mov_b32 v102, 1
    s_mov_b32 s{sT}, {WS_FLAG + FL_RL + 0x1000}
    s_waitcnt vmcnt(0)
    v_readfirstlane_b32 s{sT2}, v100
    s_cmp_lg_u32 s{sT2}, 31
    s_cbranch_scc1 kb_rl_sent
    buffer_atomic_add v102, v101, {ws()}, s{sT} offen sc0 sc1
    s_waitcnt vmcnt(0)
    v_readfirstlane_b32 s{sT2}, v102
    s_cmp_lg_u32 s{sT2}, 31
    s_cbranch_scc1 kb_rl_sent
    s_mov_b64 exec, 0xffff
    v_lshlrev_b32 v101, 7, v{vL}
    v_mov_b32 v102, 1
    buffer_store_dword v102, v101, {ws()}, s{sT} offen offset:2048 sc1
    """)
    a.label("kb_rl_sent")
    a(f"""
    s_mov_b64 exec, -1
    v_mov_b32 v115, 0
    v_mov_b32 v114, 0
    """)
    stamp(3)
    vW0, vW1, vWD, vAT, vAC4, vHh = 112, 113, 144, 80, 16, 8
    sWD, sAT = sO, sO2
    def wd_addrs():
        a(f"""
        s_and_b32 s{sT}, s{sJ}, 1
        s_mul_i32 s{sT2}, s{sT}, {FR}
        v_add_u32 v{vW0}, s{sT2}, v{vL16}
        s_sub_u32 s{sT2}, {FR}, s{sT2}
        v_add_u32 v{vW1}, s{sT2}, v{vL16}
        """)
    a(f"""
    s_and_b32 s{sT}, s{sMEM}, 7
    s_mul_i32 s{sWD}, s{sT}, {2*FR}
    s_mul_i32 s{sT}, s{sJ}, {28*1024}
    s_add_u32 s{sWD}, s{sWD}, s{sT}
    s_add_u32 s{sWD}, s{sWD}, {WS_WD}
    """)
    wd_addrs()
    vm = VM()
    def koff(u): return (7*(u & 3) + (u >> 2))*1024
    def wd_load(u):
        a(f"s_add_u32 s{sT}, s{sWD}, {koff(u)}")
        for n in range(2):
            a(f"buffer_load_dwordx4 {vr(vWD+8*(u%14)+4*n,4)}, v{(vW0, vW1)[n]}, {ws()}, s{sT} offen sc1")
            vm.issue(("w", u))
    def ready():
        a(f"s_lshl_b32 s{sT2}, s{sGRP}, 7\ns_add_u32 s{sT2}, s{sT2}, {WS_FLAG + FL_RL + 0x1800}")
        poll("rl", 114, 115, sT2, 1, None, sleep=4)
        stamp(4)
        for u in range(14): wd_load(u)
    def mid():
        a("s_barrier"); stamp(5)
    TX = -(-3*32768 // KVT) + 1
    a("s_setprio 1")
    attention("b", {opt.get("n0a", 1): lambda: (bar(), ready()), opt.get("n0", 2): mid, TX: bar}, {})
    stamp(6)
    gu_base()
    a("s_barrier")
    gu_dma(1)
    a("s_barrier")
    stamp(7)
    gu_dma(2); gu_dma(3)
    a("s_waitcnt vmcnt(8)\ns_barrier")
    stamp(8)
    a("s_waitcnt vmcnt(0)\ns_barrier")
    gu_dma(4)
    a(f"""
    v_bfe_u32 v4, v{vL}, 3, 2
    v_add_u32 v4, 3, v4
    v_lshlrev_b32 v4, 10, v4
    v_and_b32 v5, 7, v{vL}
    v_lshl_add_u32 v4, v5, 7, v4
    v_lshrrev_b32 v5, 5, v{vL}
    v_mul_u32_u24 v5, {FR}, v5
    v_add_u32 v4, v4, v5
    s_and_b32 s{sT}, s{sGRP}, 1
    s_lshl_b32 s{sT}, s{sT}, 1
    s_lshr_b32 s{sT2}, s{sMEM}, 3
    s_add_u32 s{sT}, s{sT}, s{sT2}
    s_mul_i32 s{sT}, s{sT}, {7*1024}
    s_add_u32 s{sT}, s{sT}, s{sWD}
    buffer_load_dword v5, v4, {ws()}, s{sT if not opt.get("nowdt") else sMK} offen sc1
    """)
    gu_dma(5); gu_dma(6)
    a("s_waitcnt vmcnt(17)")
    if opt.get("pstamp"): stamp(1, inner=True)
    a("s_barrier\ns_waitcnt vmcnt(16)")
    vW0, vW1, vA0_, vA1_, vPL4, vPA4 = 4, 5, 6, 7, 0, 3
    wd_addrs()
    sFA, sHH = sT3, 63
    a(f"""
    s_lshr_b32 s{sT}, s{sJ}, 1
    s_mul_i32 s{sT2}, s{sT}, {FR}
    v_add_u32 v{vA0_}, s{sT2}, v{vL16}
    s_sub_u32 s{sT2}, {FR}, s{sT2}
    v_add_u32 v{vA1_}, s{sT2}, v{vL16}
    s_lshr_b32 s{sT2}, s{sMEM}, 3
    s_lshl_b32 s{sCNT}, s{sGRP}, 1
    s_add_u32 s{sCNT}, s{sCNT}, s{sT2}
    s_lshl_b32 s{sCNT}, s{sCNT}, 1
    s_lshl_b32 s{sFA}, s{sCNT}, 8
    s_add_u32 s{sFA}, s{sFA}, {WS_FLAG + FL_ACT}
    s_mul_i32 s{sAT}, s{sCNT}, {FR}
    s_mul_i32 s{sT2}, s{sJ}, {28*1024}
    s_add_u32 s{sAT}, s{sAT}, s{sT2}
    s_add_u32 s{sAT}, s{sAT}, {WS_ACT}
    s_add_u32 s{sCNT}, s{sCNT}, s{sT}
    s_lshl_b32 s{sHH}, s{sCNT}, 15
    s_and_b32 s{sT}, s{sMEM}, 7
    s_lshl_b32 s{sT}, s{sT}, 1
    s_and_b32 s{sT2}, s{sJ}, 1
    s_add_u32 s{sT}, s{sT}, s{sT2}
    s_lshl_b32 s26, s{sT}, 6
    s_add_u32 s26, s26, s{sHH}
    s_lshl_b32 s{sT}, s{sT}, 11
    s_add_u32 s{sHH}, s{sHH}, s{sT}
    s_add_u32 s{sHH}, s{sHH}, {WS_H}
    s_lshl_b32 s{sT}, s{sJ}, 2
    s_lshl_b32 s{sMK}, 0xf000f, s{sT}
    v_and_b32 v{vPA4}, 15, v{vL}
    v_lshlrev_b32 v{vPA4}, 2, v{vPA4}
    v_bfe_u32 v16, v{vL}, 4, 1
    v_lshl_add_u32 v{vPA4}, v16, 8, v{vPA4}
    v_and_b32 v16, 31, v{vL}
    v_lshlrev_b32 v16, 4, v16
    v_lshrrev_b32 v17, 5, v{vL}
    v_lshl_add_u32 v16, v17, 10, v16
    v_mov_b32 v{vPL4}, 0
    s_waitcnt vmcnt(0)
    """)
    if opt.get("pstamp"): stamp(2, inner=True)
    a("s_barrier")
    stamp(9)
    poll("act0", vPL4, vPA4, sFA, 2, None)
    stamp(10)
    vm, lg = VM(), VM()
    blk = {("w", u): vWD + 8*u for u in range(14)}
    free = [vAT + 8*i for i in range(8)]
    for u in range(14): vm.pos[("w", u)] = 0
    for h in range(2):
        a(f"buffer_load_dwordx4 {vr(vHh+4*h,4)}, v16, {ws()}, s{sHH} offen offset:{512*h} sc1")
        vm.issue("h")
    def g_load(kind, u):
        r = blk[(kind, u)] = free.pop(0)
        a(f"s_add_u32 s{sT}, s{sAT if kind == 'a' else sWD}, {koff(u)}")
        for n in range(2):
            va = (vA0_, vA1_)[n] if kind == "a" else (vW0, vW1)[n]
            a(f"buffer_load_dwordx4 {vr(r+4*n,4)}, v{va}, {ws()}, s{sT} offen sc1")
            vm.issue((kind, u))
    THR = opt.get("thr", 10)
    for u in range(8):
        g_load("a", u)
        if vm.n > THR: a(f"s_waitcnt vmcnt({THR})")
    for i in range(8):
        a(f"v_lshlrev_b32 v{vAC4+2*i}, 16, v{vHh+i}\nv_and_b32 v{vAC4+2*i+1}, 0xffff0000, v{vHh+i}")
    assert vm.cnt("h") >= THR
    LW0, LW1 = 14, 22
    vLWD, vPN = 8, 9
    a(f"s_lshl_b32 s{sT2}, s{sJ}, 14\ns_add_u32 s{sT2}, s{sT2}, 0x8000\nv_add_u32 v{vLWD}, s{sT2}, v{vL16}")
    def poll_issue():
        a(f"buffer_load_dword v{vPN}, v{vPA4}, {ws()}, s{sFA} offen sc1"); vm.issue("p")
    for u in range(LW0, LW1):
        for n in range(2):
            a(f"s_add_u32 m0, s{sT2}, {(u-LW0)*2048 + n*1024}")
            a(f"s_add_u32 s{sT}, s{sWD}, {koff(u)}" if n == 0 else "s_nop 0")
            a(f"buffer_load_dwordx4 v{(vW0, vW1)[n]}, {ws()}, s{sT} offen sc1 lds"); vm.issue(("l", u))
        a(f"s_waitcnt vmcnt({THR})")
        if u == LW1 - 3: poll_issue()
    a(f"s_setprio {opt.get('p4prio', 0)}")
    GATE = {0: 3, 3: 4, 6: 5, 10: 6, 13: 7}
    PI, PR = {0: 3, 3: 6, 6: 10}, {-1: 0}
    if opt.get("sched") == 1: GATE, PI = {0: 3, 3: 4, 6: 5, 9: 6, 12: 7}, {1: 6, 6: 9, 9: 12}
    PR = {0} | set(PI.values())
    queue = sorted([("a", u) for u in range(8, 28)] + [("w", u) for u in range(LW1, 28)], key=lambda k: (k[1], k[0]))
    avail = 2
    LAH = opt.get("lah", 11)
    for u in range(28):
        w = f"vmcnt({min(63, vm.cnt(('a', u)), *([] if LW0 <= u < LW1 else [vm.cnt(('w', u))]))})"
        if LW0 <= u < LW1: w += f" lgkmcnt({lg.cnt(u)})"
        a("s_waitcnt " + w)
        if opt.get("pstamp") and u % 4 == 0 and u < 24: stamp(3 + u//4, wait=False, inner=True)
        for k in (1, 2, 3, 0):
            A = vAC4 + 16*k
            mf32(A, blk[("w", u)] + 4*(k & 1), blk[("a", u)] + 4*(k >> 1), "0" if (u == 0 and k) else A)
        free += [blk[("w", u)], blk[("a", u)]]
        if LW0 <= u + 2 < LW1:
            r = blk[("w", u+2)] = free.pop(0)
            if u + 2 == LW0: a(f"s_waitcnt vmcnt({min(63, vm.cnt(('l', LW1-1)))})")
            for n in range(2):
                a(f"ds_read_b128 {vr(r+4*n,4)}, v{vLWD} offset:{(u+2-LW0)*2048 + n*1024}"); lg.issue(u + 2)
        if u in PR: a(f"s_waitcnt vmcnt({vm.cnt('p')})\nv_max_u32 v{vPL4}, v{vPL4}, v{vPN}")
        if u in GATE:
            avail = GATE[u]
            poll(f"act{avail}", vPL4, vPA4, sFA, avail, sMK)
            if avail == 7: stamp(11)
        if u in PI: poll_issue()
        if u == 20: a("s_barrier")
        for key in list(queue):
            if not free or key[1] > u + LAH: break
            if key[0] == "a" and key[1] >= 4*avail: continue
            g_load(*key); queue.remove(key)
    assert not queue
    stamp(12)
    for k in range(1, 4):
        a(f"s_xor_b32 s{sT}, s{sJ}, {k}\ns_mul_i32 s{sT}, s{sT}, {3*4096}\ns_add_u32 s{sT}, s{sT}, {L_RED + (k-1)*4096}")
        a(f"v_add_u32 v{4+k}, s{sT}, v{vL16}")
    a(f"s_mul_i32 s{sT}, s{sJ}, {3*4096}\ns_add_u32 s{sT}, s{sT}, {L_RED}\nv_add_u32 v4, s{sT}, v{vL16}")
    for k in range(1, 4):
        for q in range(4):
            a(f"ds_write_b128 v{4+k}, {vr(vAC4+16*k+4*q,4)} offset:{q*1024}")
    srd(a, OUT, 22, 2048*1024)
    a(f"""
    v_and_b32 v8, 31, v{vL}
    v_lshlrev_b32 v8, 10, v8
    v_lshrrev_b32 v9, 5, v{vL}
    v_lshl_add_u32 v8, v9, 5, v8
    s_waitcnt lgkmcnt(0)
    s_barrier
    """)
    stamp(13)
    for q in range(4):
        for k in range(3):
            a(f"ds_read_b128 {vr(32+16*k+4*q,4)}, v4 offset:{k*4096 + q*1024}")
    for q in range(4):
        a(f"s_waitcnt lgkmcnt({9-3*q})")
        for r in range(4*q, 4*q + 4):
            a(f"v_add_f32 v{vAC4+r}, v{vAC4+r}, v{32+r}\nv_add_f32 v{48+r}, v{48+r}, v{64+r}")
        for r in range(4*q, 4*q + 4): a(f"v_add_f32 v{vAC4+r}, v{vAC4+r}, v{48+r}")
        for r in range(2*q, 2*q + 2): a(f"v_cvt_pk_bf16_f32 v{80+r}, v{vAC4+2*r}, v{vAC4+2*r+1}")
        if q & 1:
            a(f"buffer_store_dwordx4 {vr(80+4*(q>>1),4)}, v8, s[{OUT}:{OUT+3}], s26 offen offset:{16*(q>>1)}" + (" sc1" if opt.get("outsc1") else ""))
    a("s_branch kb_done")
    slow_path("b")

    a.label("kb_done")
    if opt.get("stamp"):
        a("s_waitcnt vmcnt(0)")
        stamp(14)
        a(f"""
        s_lshl_b32 s{sT}, s2, 3
        s_add_u32 s{sT}, s{sT}, s{sW}
        s_lshl_b32 s{sT}, s{sT}, 6
        s_add_u32 s{sT}, s{sT}, {WS_DBG + 0x10000}
        v_mov_b32 v1, 0
        """)
        for i in range(16): a(f"v_mov_b32 v{4+i}, s{64+2*min(i,14)}")
        for i in range(4): a(f"buffer_store_dwordx4 {vr(4+4*i,4)}, v1, {ws()}, s{sT} offen offset:{16*i}")
    if opt.get("dstamp"):
        w = opt["dstamp"] - 1
        a(f"""
        s_cmp_lg_u32 s2, 100
        s_cbranch_scc1 kb_exit
        s_cmp_lg_u32 s{sW}, {w}
        s_cbranch_scc1 kb_exit
        s_load_dwordx2 s[4:5], s[0:1], 80
        s_waitcnt lgkmcnt(0)
        s_sub_u32 s4, s4, 512
        s_subb_u32 s5, s5, 0
        s_mov_b32 s6, 256
        s_mov_b32 s7, 0x00020000
        """)
        for i in range(13): a(f"buffer_store_dword v{4+(i if i < 12 else 14)+(1 if 0 < i < 12 else 0)}, v1, s[4:7], 0 offen offset:{12+4*i}")
    a.label("kb_exit")
    a("s_endpgm")
```

```python
from asmlib import *
from layout import *
from ka import srd

KB_LDS = 163840
L_STG = 135168
L_OXH = L_STG
L_OXL = 159744
L_LNS = 162816
L_RED = 98304
FR = 114688
SPIN = 1 << 15

STAMPS = {"w0-3": ["start", "B1", "attn", "B4", "st1", "B5", "st2", "B6", "stored", "acked", "BA", "seen", "BB", "T0", "end"],
          "w4-7": ["start", "B1", "B3", "rl", "rlseen", "B4", "attn", "B6", "BA", "BC", "seen0", "seen6", "mm", "red", "end"]}

WS, X, OUT, RA, RB, RD = 28, 32, 36, 40, 44, 48
sW, sJ, sGRP, sMEM, sT, sT2, sT3, sO, sO2, sCNT, sMK, sMODE = 52, 53, 54, 55, 56, 57, 58, 59, 60, 61, 62, 98
vL, vL16, vT, vT2 = 1, 2, 3, 0

vQ, vK, vV, vP, vKA, vVA, vOXW, vIX, vS, vO, vC = 4, 8, 16, 32, 40, 43, 46, 47, 48, 80, 96

class VM:
    def __init__(self): self.n = 0; self.pos = {}
    def issue(self, key=None):
        self.n += 1
        if key is not None: self.pos[key] = self.n
    def cnt(self, key): return self.n - self.pos[key]

def ws(): return f"s[{WS}:{WS+3}]"

def gen_kb(a, name, opt):
    def stamp(i, wait=True, inner=False):
        if opt.get("astamp") and 7 <= i <= 13 and not inner: return
        if opt.get("pstamp") and 1 <= i <= 8 and not inner: return
        if opt.get("stamp"):
            a(f"{'s_memtime' if opt.get('cyc') else 's_memrealtime'} s[{64+2*i}:{65+2*i}]")
            if wait: a("s_waitcnt lgkmcnt(0)")
    def mf32(d, x, y, c): a(f"v_mfma_f32_32x32x16_bf16 {vr(d,16)}, {vr(x,4)}, {vr(y,4)}, {c if isinstance(c,str) else vr(c,16)}")

    def sm32(x, y): a(f"v_smfmac_f32_32x32x32_bf16 {vr(vO,16)}, {vr(x,4)}, {vr(y,8)}, v{vIX}")
    def attention(tag, hooks, extras):
        lg = VM()
        def rd_k(t):
            if t >= 64: return
            b, o = divmod(t, 30)
            a(f"ds_read_b128 {vr(vK+4*(t&1),4)}, v{vKA+b} offset:{o*KVT}"); lg.issue(("k", t))
        def rd_v(t, u):
            if t >= 64: return
            b, o = divmod(t, 30)
            a(f"ds_read_b128 {vr(vV+8*(t&1)+4*u,4)}, v{vVA+b} offset:{o*KVT+u*VH}"); lg.issue(("v", t, u))
        rd_k(0); rd_k(1); rd_v(0, 0); rd_v(0, 1); rd_v(1, 0)
        a(f"s_waitcnt lgkmcnt({lg.cnt(('k', 0))})")
        mf32(vS, vK, vQ, "0")
        rd_k(2)
        a("s_nop 10")
        for t in range(64):
            S, N = vS + 16*(t & 1), vS + 16*((t+1) & 1)
            ex = list(extras.get(t, []))
            def e(*idx):
                for i in idx: a(f"v_exp_f32 v{S+i}, v{S+i}")
            def extra():
                if ex: ex.pop(0)()
            if opt.get("astamp") and t and t % 8 == 0: stamp(6 + t//8, wait=False, inner=True)
            if t in hooks: hooks[t]()
            e(0, 1)
            need = [("v", t, 0)] + ([("v", t-1, 1)] if t else []) + ([("k", t+1)] if t < 63 else [])
            a(f"s_waitcnt lgkmcnt({min(lg.cnt(k) for k in need)})")
            if t > 0: sm32(vV + 8*((t-1) & 1) + 4, N + 8)
            rd_v(t + 1, 1); extra()
            e(2, 3, 4)
            if t < 63: mf32(N, vK + 4*((t+1) & 1), vQ, "0")
            rd_k(t + 3); extra()
            e(5, 6, 7, 8, 9)
            sm32(vV + 8*(t & 1), S)
            rd_v(t + 2, 0); extra()
            e(10, 11, 12, 13, 14, 15)
            assert not ex
        a("s_waitcnt lgkmcnt(0)\ns_nop 0")
        sm32(vV + 8 + 4, vS + 16 + 8)
        a(f"""
        s_mov_b32 s{sT}, {f32(2.0**-64)}
        s_mov_b32 s{sT2}, {f32(2.0**64)}
        s_nop 11
        v_cmp_lt_f32 vcc, s{sT}, v{vO+8}
        v_cmp_gt_f32 s[96:97], s{sT2}, v{vO+8}
        v_rcp_f32 v{vT}, v{vO+8}
        s_and_b64 vcc, vcc, s[96:97]
        s_cmp_eq_u64 vcc, -1
        s_cbranch_scc0 slow_{tag}
        """)
        a.label(f"norm_{tag}")
        for r in range(8): a(f"v_mul_f32 v{vO+r}, v{vO+r}, v{vT}")
        for r in range(4): a(f"v_cvt_pk_bf16_f32 v{vP+r}, v{vO+2*r}, v{vO+2*r+1}")
        a(f"ds_write_b128 v{vOXW}, {vr(vP,4)}\ns_waitcnt lgkmcnt(0)")

    def slow_path(tag):
        a.label(f"slow_{tag}")
        vM = vC
        a(f"v_mov_b32 v{vM}, 0xff800000\ns_mov_b32 s{sT}, {WS_KV}")
        a.label(f"slow1_{tag}")
        a(f"buffer_load_dwordx4 {vr(vK,4)}, v{vKA}, {ws()}, s{sT} offen\ns_waitcnt vmcnt(0)")
        mf32(vS, vK, vQ, "0")
        a(f"s_add_u32 s{sT}, s{sT}, {KVT}\ns_nop 11")
        for r in range(8): a(f"v_max3_f32 v{vM}, v{vM}, v{vS+2*r}, v{vS+2*r+1}")
        a(f"""
        s_cmp_lg_u32 s{sT}, {WS_KV + 64*KVT}
        s_cbranch_scc1 slow1_{tag}
        v_mov_b32 v{vM+1}, v{vM}
        s_nop 1
        v_permlane32_swap_b32 v{vM}, v{vM+1}
        v_max_f32 v{vM}, v{vM}, v{vM+1}
        v_sub_f32 v{vM}, 0, v{vM}
        """)
        for r in range(1, 16): a(f"v_mov_b32 v{vM+r}, v{vM}")
        for r in range(16): a(f"v_mov_b32 v{vO+r}, 0")
        a(f"s_mov_b32 s{sT}, {WS_KV}")
        a.label(f"slow2_{tag}")
        a(f"""
        buffer_load_dwordx4 {vr(vK,4)}, v{vKA}, {ws()}, s{sT} offen
        buffer_load_dwordx4 {vr(vV,4)}, v{vVA}, {ws()}, s{sT} offen
        buffer_load_dwordx4 {vr(vV+4,4)}, v{vVA}, {ws()}, s{sT} offen offset:{VH}
        s_waitcnt vmcnt(0)
        """)
        mf32(vS, vK, vQ, vM)
        a(f"s_add_u32 s{sT}, s{sT}, {KVT}\ns_nop 11")
        for r in range(16): a(f"v_exp_f32 v{vS+r}, v{vS+r}")
        a("s_nop 1")
        sm32(vV, vS)
        sm32(vV + 4, vS + 8)
        a(f"""
        s_nop 15
        s_cmp_lg_u32 s{sT}, {WS_KV + 64*KVT}
        s_cbranch_scc1 slow2_{tag}
        v_rcp_f32 v{vT}, v{vO+8}
        s_branch norm_{tag}
        """)

    def poll(tag, vdst, vaddr, soff, need, mask, sleep=0):
        a(f"s_mov_b32 s{sCNT}, {SPIN}")
        a.label(f"poll_{tag}")
        a(f"v_cmp_le_u32 vcc, {need}, v{vdst}\ns_sub_u32 s{sCNT}, s{sCNT}, 1\ns_cbranch_scc1 done_{tag}")
        if mask is None:
            a("s_cmp_eq_u64 vcc, -1")
        else:
            a(f"s_and_b32 s{sT}, vcc_lo, s{mask}\ns_cmp_eq_u32 s{sT}, s{mask}")
        a(f"s_cbranch_scc1 done_{tag}")
        if sleep: a(f"s_sleep {sleep}")
        a(f"buffer_load_dword v{vdst}, v{vaddr}, {ws()}, s{soff} offen sc1\ns_waitcnt vmcnt(0)")
        a(f"s_branch poll_{tag}")
        a.label(f"done_{tag}")

    a.label(name)
    a(f"""
    s_cmp_ge_u32 s2, 256
    s_cbranch_scc1 kb_exit
    s_load_dwordx2 s[24:25], s[0:1], 88
    s_load_dwordx16 s[4:19], s[0:1], 0
    s_load_dwordx4 s[20:23], s[0:1], 64
    """)
    stamp(0, wait=False)
    a(f"""
    v_lshrrev_b32 v{vT}, 6, v0
    v_and_b32 v{vL}, 63, v0
    s_lshr_b32 s{sT}, s2, 3
    v_readfirstlane_b32 s{sW}, v{vT}
    s_and_b32 s{sMEM}, s{sT}, 15
    s_lshr_b32 s{sT}, s{sT}, 4
    s_and_b32 s{sGRP}, s2, 7
    s_lshl_b32 s{sGRP}, s{sGRP}, 1
    s_add_u32 s{sGRP}, s{sGRP}, s{sT}
    v_lshlrev_b32 v{vL16}, 4, v{vL}
    s_and_b32 s{sJ}, s{sW}, 3
    s_lshl_b32 s{sT}, s{sGRP}, 4
    s_add_u32 s{sT}, s{sT}, s{sMEM}
    s_lshl_b32 s{sT}, s{sT}, 3
    s_add_u32 s{sT}, s{sT}, s{sW}
    s_lshl_b32 s{sT}, s{sT}, 10
    s_lshl_b32 s{sO}, s{sJ}, 10
    s_waitcnt lgkmcnt(0)
    """)
    srd(a, WS, 24, WS_SIZE)
    a(f"""
    buffer_load_dwordx4 {vr(vQ,4)}, v{vL16}, {ws()}, s{sT} offen
    s_cmp_ge_u32 s{sW}, 4
    s_cbranch_scc1 kb_grpb
    """)
    def attn_addrs(oxbase):
        a(f"""
        v_mov_b32 v{vKA}, v{vL16}
        v_add_u32 v{vKA+1}, {30*KVT}, v{vL16}
        v_add_u32 v{vKA+2}, {60*KVT}, v{vL16}
        v_lshrrev_b32 v{vT}, 5, v{vL}
        v_and_b32 v{vVA}, 15, v{vL}
        v_lshlrev_b32 v{vVA}, 4, v{vVA}
        v_lshl_add_u32 v{vVA}, v{vT}, 8, v{vVA}
        s_mov_b32 exec_lo, 0xffff0000
        s_mov_b32 exec_hi, 0xffff0000
        v_mov_b32 v{vVA}, 0x210
        s_mov_b32 exec_lo, 0x00110000
        s_mov_b32 exec_hi, 0x00110000
        v_mov_b32 v{vVA}, 0x200
        s_mov_b64 exec, -1
        v_mov_b32 v{vIX}, 0xdddddddd
        v_add_u32 v{vVA}, 0x400, v{vVA}
        v_add_u32 v{vVA+1}, {30*KVT}, v{vVA}
        v_add_u32 v{vVA+2}, {60*KVT}, v{vVA}
        s_lshl_b32 s{sT}, s{sJ}, 10
        s_add_u32 s{sT}, s{sT}, {oxbase}
        v_lshl_add_u32 v{vOXW}, v{vT}, 7, s{sT}
        v_bfe_u32 v{vT}, v{vL}, 3, 2
        v_lshl_add_u32 v{vOXW}, v{vT}, 8, v{vOXW}
        v_and_b32 v{vT}, 7, v{vL}
        v_lshl_add_u32 v{vOXW}, v{vT}, 4, v{vOXW}
        """)
        for r in range(16): a(f"v_mov_b32 v{vO+r}, 0")
    R1, R2 = opt.get("r1", 3), opt.get("r2", 10)
    def first_tile_needing(nbytes):
        for t in range(64):
            if (t + 3)*KVT + 1024 > nbytes: return t
    R3 = 22
    TB2, TB3, TB4 = first_tile_needing(R1*4096), first_tile_needing(R2*4096), first_tile_needing(R3*4096)

    a(f"s_setprio 2\ns_lshl_b32 s{sO}, s{sJ}, 17\ns_add_u32 s{sO}, s{sO}, {WS_WO}")
    attn_addrs(L_OXL)
    a("s_waitcnt vmcnt(0)\ns_barrier")
    stamp(1)
    vAc, vB, vOXR, vHO, vLW, vLR, vFO, vWR = 8, 40, 52, 53, 54, 55, 56, 59
    wreg = lambda f: 64 + 4*((f + 12) % 48)
    vm = VM()
    def wo_load(f):
        if f and f % 4 == 0: a(f"s_add_u32 s{sO}, s{sO}, 0x1000")
        a(f"buffer_load_dwordx4 {vr(wreg(f),4)}, v{vL16}, {ws()}, s{sO} offen offset:{(f%4)*1024}"); vm.issue(f)
    TRY = opt.get("try", 22)
    bar = lambda: a("s_barrier")
    extras = {TRY + i: [lambda f=2*i: wo_load(f), lambda f=2*i+1: wo_load(f)] for i in range(18)}
    attention("a", {TB2: bar, TB3: bar, TB4: bar}, extras)
    stamp(2)
    a(f"s_setprio {opt.get('hprio', 2)}\ns_barrier")
    stamp(3)
    srd(a, X, 4, 2048*1024)
    a(f"""
    v_and_b32 v{vT}, 7, v{vL}
    v_lshrrev_b32 v{vT2}, 4, v{vL}
    v_lshlrev_b32 v60, 10, v{vT}
    v_lshl_add_u32 v60, v{vT2}, 6, v60
    s_lshl_b32 s{sT}, s{sGRP}, 4
    s_add_u32 s{sT}, s{sT}, s{sMEM}
    s_lshl_b32 s{sT}, s{sT}, 13
    s_lshl_b32 s{sT2}, s{sJ}, 8
    s_add_u32 s{sT}, s{sT}, s{sT2}
    """)
    vX = wreg(44)
    for i in range(4): a(f"buffer_load_dwordx4 {vr(vX+4*i,4)}, v60, s[{X}:{X+3}], s{sT} offen offset:{16*i}")
    a(f"""
    v_and_b32 v61, 15, v{vL}
    v_lshlrev_b32 v61, 2, v61
    s_lshl_b32 s{sT}, s{sGRP}, 7
    s_add_u32 s{sT}, s{sT}, {WS_FLAG + FL_XID}
    buffer_load_dword v62, v61, {ws()}, s{sT} offen sc1
    """)
    for f in range(36, 44): wo_load(f)
    a(f"""
    v_lshlrev_b32 v{vLR}, 4, v{vT}
    v_lshl_add_u32 v{vOXR}, v{vT2}, 7, v{vLR}
    v_add_u32 v{vOXR}, {L_OXH}, v{vOXR}
    v_lshrrev_b32 v{vT2}, 3, v{vL}
    v_lshl_add_u32 v{vHO}, v{vT2}, 10, v{vLR}
    v_add_u32 v{vLR}, {L_LNS}, v{vLR}
    v_lshrrev_b32 v{vT2}, 5, v{vL}
    v_lshl_add_u32 v{vLW}, v{vT2}, 7, v{vLR}
    s_lshl_b32 s{sT}, s{sJ}, 2
    v_add_u32 v{vLW}, s{sT}, v{vLW}
    s_lshl_b32 s{sCNT}, s{sJ}, 14
    s_add_u32 s{sCNT}, s{sCNT}, 0x8000
    v_add_u32 v{vWR}, s{sCNT}, v{vL16}
    s_getreg_b32 s{sT}, hwreg(HW_REG_XCC_ID, 0, 4)
    s_add_u32 s{sT}, s{sT}, 1
    s_waitcnt vmcnt(8)
    v_cmp_eq_u32 vcc, s{sT}, v62
    v_mov_b32 v{vFO}, 0x40000000
    v_mov_b32 v{vFO+1}, 0x40000000
    s_cmp_eq_u64 vcc, -1
    s_cselect_b32 s{sMODE}, {0 if opt.get("slowmode") else 1}, 0
    s_cmp_eq_u32 s{sMODE}, 1
    s_cselect_b32 s{sT}, 0, 0x40000000
    s_cselect_b32 s{sT2}, 0x40000000, 0
    v_writelane_b32 v{vFO}, s{sT}, 0
    v_writelane_b32 v{vFO+1}, s{sT2}, 0
    """)
    for i in range(16):
        a(f"v_lshlrev_b32 v{vAc+2*i}, 16, v{vX+i}\nv_and_b32 v{vAc+2*i+1}, 0xffff0000, v{vX+i}")
    for f in range(44, 48): wo_load(f)
    a(f"""
    s_mul_i32 s{sMK}, s{sMEM}, {7*32768}
    s_and_b32 s{sT2}, s{sGRP}, 1
    s_lshl_b32 s{sT2}, s{sT2}, 2
    s_add_u32 s{sT2}, s{sT2}, s{sJ}
    s_mul_i32 s{sT2}, s{sT2}, {24*1024}
    s_add_u32 s{sMK}, s{sMK}, s{sT2}
    s_add_u32 s{sMK}, s{sMK}, {WS_WGU + 32768}
    v_mov_b32 v63, 0x40000000
    s_mov_b64 exec, 0xffff
    v_lshlrev_b32 v63, 7, v{vL}
    s_mov_b64 exec, -1
    """)
    def oproj(k0):
        lg = VM()
        def ox_read(ks):
            off = (L_OXL - L_OXH) + ks*512 if ks < 8 else (ks - 8)*512
            a(f"ds_read_b128 {vr(vB+4*(ks%3),4)}, v{vOXR} offset:{off}"); lg.issue(("o", ks))
        ox_read(k0); ox_read(k0 + 1)
        for ks in range(k0, k0 + 8):
            a(f"s_waitcnt lgkmcnt({lg.cnt(('o', ks))})" + (f" vmcnt({vm.cnt(8*ks+7)})" if ks < 8 else ""))
            for jt in range(8):
                f = 8*ks + jt
                a(f"v_mfma_f32_16x16x32_bf16 {vr(vAc+4*jt,4)}, {vr(wreg(f),4)}, {vr(vB+4*(ks%3),4)}, {vr(vAc+4*jt,4)}")
                if jt == 0 and ks + 2 < k0 + 8: ox_read(ks + 2)
                if f + 48 < 112:
                    wo_load(f + 48)
                    if f % 5 == 2 and f//5 < 12:
                        a(f"buffer_load_dword v62, v63, {ws()}, s{sMK} offen offset:{(f//5 & 1)*2048} sc1"); vm.issue()
                        if f//5 & 1: a(f"s_add_u32 s{sMK}, s{sMK}, 0x1000")
                elif 72 <= f < 104 and f & 1:
                    g = 112 + (f - 72)//2
                    a(f"ds_read_b128 {vr(wreg(g),4)}, v{vWR} offset:{(g-112)*1024}"); lg.issue()
    oproj(0)
    stamp(4)
    slot = [0, 3, 1, 2, 4, 0, 3]
    sG = 63
    def gu_base():
        a(f"""
        s_mul_i32 s{sG}, s{sMEM}, {7*32768}
        s_lshl_b32 s{sT3}, s{sJ}, 13
        s_add_u32 s{sG}, s{sG}, s{sT3}
        s_add_u32 s{sG}, s{sG}, {WS_WGU}
        """)
    def gu_dma(t):
        for i in range(8):
            if i % 4 == 0:
                a(f"s_add_u32 m0, s{sT3}, {slot[t]*32768 + (i//4)*4096}\ns_add_u32 s{sT}, s{sG}, {t*32768 + (i//4)*4096}")
            a(f"buffer_load_dwordx4 v{vL16}, {ws()}, s{sT} offen offset:{(i%4)*1024} sc1 lds")
    sHN, sFL = sO2, 27
    a(f"""
    s_lshl_b32 s{sT}, s{sGRP}, 2
    s_lshr_b32 s{sT2}, s{sMEM}, 2
    s_add_u32 s{sT}, s{sT}, s{sT2}
    s_lshl_b32 s{sFL}, s{sT}, 8
    s_lshl_b32 s{sHN}, s{sT}, 15
    s_lshl_b32 s{sT}, s{sJ}, 13
    s_add_u32 s{sHN}, s{sHN}, s{sT}
    s_and_b32 s{sT2}, s{sMEM}, 3
    s_lshl_b32 s{sT}, s{sT2}, 7
    s_add_u32 s{sHN}, s{sHN}, s{sT}
    s_add_u32 s{sHN}, s{sHN}, {WS_HN}
    s_lshl_b32 s{sT2}, s{sT2}, 2
    s_add_u32 s{sT2}, s{sT2}, s{sJ}
    s_lshl_b32 s{sT2}, s{sT2}, 2
    s_add_u32 s{sFL}, s{sFL}, s{sT2}
    s_add_u32 s{sFL}, s{sFL}, {WS_FLAG + FL_HN}
    s_add_u32 s{sT}, s{sFL}, {FL_ACT - FL_HN}
    buffer_load_dword v62, v{vHO}, {ws()}, s{sHN} offen sc1
    buffer_load_dword v62, v{vHO}, {ws()}, s{sHN} offen offset:512 sc1
    buffer_load_dword v62, v{vFO}, {ws()}, s{sFL} offen sc1
    buffer_load_dword v62, v{vFO}, {ws()}, s{sT} offen sc1
    """)
    AL2 = opt.get("actl2", 2)
    if AL2:
        a(f"""
        s_lshl_b32 s{sT}, s{sGRP}, 2
        s_add_u32 s{sT}, s{sT}, s{sJ}
        s_mul_i32 s{sT}, s{sT}, {FR}
        s_mul_i32 s{sT2}, s{sMEM}, {7*1024}
        s_add_u32 s{sT}, s{sT}, s{sT2}
        s_add_u32 s{sT}, s{sT}, {WS_ACT + (7 - AL2)*1024}
        v_lshlrev_b32 v63, 7, v{vL}
        s_mov_b32 exec_lo, {((1 << 8*AL2) - 1) & 0xffffffff:#x}
        s_mov_b32 exec_hi, {((1 << 8*AL2) - 1) >> 32:#x}
        buffer_load_dword v62, v63, {ws()}, s{sT} offen sc1
        s_mov_b64 exec, -1
        """)
    gu_base()
    a("s_barrier")
    for i in range(16):
        if i % 4 == 0: a(f"s_add_u32 m0, s{sCNT}, {i*1024}\ns_add_u32 s{sO}, s{sO}, 0x1000")
        a(f"buffer_load_dwordx4 v{vL16}, {ws()}, s{sO} offen offset:{(i%4)*1024} lds")
    gu_dma(0)
    a("s_waitcnt vmcnt(0)\ns_setprio 3\ns_barrier")
    stamp(5)
    oproj(8)
    stamp(6)
    a("s_nop 2\ns_mov_b32 exec_lo, 0xff00ff00\ns_mov_b32 exec_hi, 0xff00ff00")
    for i in range(16): a(f"v_mov_b32 v{vAc+i}, v{vAc+16+i}")
    a("s_mov_b64 exec, -1")
    s0, s1, q0, q1, vH, vN = 64, 65, 66, 67, 120, 80
    a(f"v_add_f32 v{s0}, v{vAc}, v{vAc+2}\nv_add_f32 v{s1}, v{vAc+1}, v{vAc+3}")
    a(f"v_mul_f32 v{q0}, v{vAc}, v{vAc}\nv_mul_f32 v{q1}, v{vAc+1}, v{vAc+1}")
    for i in range(2, 16):
        if i >= 4: a(f"v_add_f32 v{s0+(i&1)}, v{s0+(i&1)}, v{vAc+i}")
        a(f"v_fmac_f32 v{q0+(i&1)}, v{vAc+i}, v{vAc+i}")
    a(f"""
    v_add_f32 v{s0}, v{s0}, v{s1}
    v_add_f32 v{q0}, v{q0}, v{q1}
    v_cvt_pk_bf16_f32 v{vH}, v{vAc}, v{vAc+1}
    v_cvt_pk_bf16_f32 v{vH+1}, v{vAc+2}, v{vAc+3}
    v_permlane32_swap_b32 v{s0}, v{q0}
    v_add_f32 v{s0}, v{s0}, v{q0}
    v_cvt_pk_bf16_f32 v{vH+2}, v{vAc+4}, v{vAc+5}
    v_cvt_pk_bf16_f32 v{vH+3}, v{vAc+6}, v{vAc+7}
    v_add_f32_dpp v{s0}, v{s0}, v{s0} row_ror:8 row_mask:0xf bank_mask:0xf
    v_mov_b32 v{s1}, v{s0}
    v_cvt_pk_bf16_f32 v{vH+4}, v{vAc+8}, v{vAc+9}
    v_cvt_pk_bf16_f32 v{vH+5}, v{vAc+10}, v{vAc+11}
    v_permlane16_swap_b32 v{s0}, v{s1}
    v_add_f32 v{s0}, v{s0}, v{s1}
    ds_write_b32 v{vLW}, v{s0}
    v_cvt_pk_bf16_f32 v{vH+6}, v{vAc+12}, v{vAc+13}
    v_cvt_pk_bf16_f32 v{vH+7}, v{vAc+14}, v{vAc+15}
    s_waitcnt lgkmcnt(0)
    s_barrier
    """)
    stamp(7)
    a(f"""
    ds_read_b128 v[64:67], v{vLR}
    ds_read_b128 v[68:71], v{vLR} offset:128
    s_add_u32 s26, s{sHN}, {WS_H - WS_HN}
    v_mov_b32 v58, 1
    s_waitcnt lgkmcnt(0)
    v_add_f32 v64, v64, v65
    v_add_f32 v68, v68, v69
    v_add_f32 v66, v66, v67
    v_add_f32 v70, v70, v71
    v_add_f32 v64, v64, v66
    v_add_f32 v68, v68, v70
    v_mul_f32 v64, {f32(1/512)}, v64
    v_mul_f32 v68, {f32(1/512)}, v68
    v_fma_f32 v68, -v64, v64, v68
    v_max_f32 v68, 0, v68
    v_add_f32 v68, {f32(1e-5)}, v68
    v_rsq_f32 v68, v68
    s_nop 0
    v_mul_f32 v68, {f32(LOG2E)}, v68
    v_mul_f32 v64, v64, v68
    """)
    for i in range(16): a(f"v_fma_f32 v{vAc+i}, v{vAc+i}, v68, -v64")
    a(f"s_cmp_eq_u32 s{sMODE}, 1")
    for i in range(8): a(f"v_cvt_pk_bf16_f32 v{vN+i}, v{vAc+2*i}, v{vAc+2*i+1}")
    a("s_cbranch_scc0 kb_hn_far")
    def hn_store(fl):
        for h in range(2): a(f"buffer_store_dwordx4 {vr(vN+4*h,4)}, v{vHO}, {ws()}, s{sHN} offen offset:{512*h}{fl}")
    hn_store("")
    a.label("kb_hn_back")
    stamp(8)
    vPL, vPA, vA0, vAcc, vAR, vE, vPk, vHN = 4, 5, 6, 16, 64, 96, 112, 128
    sAC, sAF = sO, sMK
    a(f"""
    s_lshl_b32 s{sT}, s{sGRP}, 2
    s_add_u32 s{sT}, s{sT}, s{sJ}
    s_mul_i32 s{sAC}, s{sT}, {FR}
    s_mul_i32 s{sT2}, s{sMEM}, {7*1024}
    s_add_u32 s{sAC}, s{sAC}, s{sT2}
    s_add_u32 s{sAC}, s{sAC}, {WS_ACT}
    s_lshl_b32 s{sG}, s{sT}, 15
    s_add_u32 s{sG}, s{sG}, {WS_HN}
    s_lshl_b32 s{sT}, s{sT}, 8
    s_lshl_b32 s{sT2}, s{sMEM}, 2
    s_add_u32 s{sAF}, s{sT}, s{sT2}
    s_add_u32 s{sAF}, s{sAF}, {WS_FLAG + FL_ACT}
    s_add_u32 s{sT2}, s{sT}, {WS_FLAG + FL_HN}
    v_and_b32 v{vPA}, 15, v{vL}
    v_lshlrev_b32 v{vPA}, 2, v{vPA}
    v_mov_b32 v{vPL}, 0
    v_add_u32 v{vA0+1}, 0x10000, v{vL16}
    v_mov_b32 v9, v{vFO}
    v_mov_b32 v10, v{vFO+1}
    v_mov_b32 v13, v{vHO}
    s_cmp_eq_u32 s{sMODE}, 1
    s_cselect_b32 s{sT}, 0, 0x40000000
    s_cselect_b32 s{sCNT}, 0x40000000, 0
    v_add_u32 v14, s{sT}, v{vL16}
    v_add_u32 v15, s{sCNT}, v{vL16}
    v_add_u32 v{vA0+2}, 0x20000, v{vL16}
    s_waitcnt vmcnt(0)
    """)
    stamp(9)
    vFO2, vFV, vHO2 = 9, 11, 13
    def flag(v, soff):
        return f"buffer_store_dword v{v}, v{vFO2}, {ws()}, s{soff} offen\nbuffer_store_dword v{v}, v{vFO2+1}, {ws()}, s{soff} offen sc1"
    a(flag(58, sFL))
    a("s_barrier")
    stamp(10)
    poll("hn", vPL, vPA, sT2, 1, None)
    stamp(11)
    vm = VM()
    def hn_load(s):
        if s and s % 4 == 0: a(f"s_add_u32 s{sG}, s{sG}, 0x1000")
        a(f"buffer_load_dwordx4 {vr(vHN+4*s,4)}, v{vL16}, {ws()}, s{sG} offen offset:{(s%4)*1024} sc1"); vm.issue(("hn", s))
    HL = opt.get("hl", 14)
    for s in range(HL): hn_load(s)
    seq = [(t, s) for s in range(32) for t in (0, 1)] + [(t, s) for t in range(2, 7) for s in range(32)]
    LA = 7
    def a_read(n):
        t, s = seq[n]
        base = {0: vL16, 1: vA0+1, 2: vA0+2}[slot[t] >> 1]
        a(f"ds_read_b128 {vr(vAR+4*(n%8),4)}, v{base} offset:{(slot[t]&1)*32768 + s*1024}")
    sLG = sT3
    a(f"s_mov_b32 s{sLG}, {f32(LOG2E)}")
    def epilogue(t):
        A, pk = vAcc + 16*(t % 3), vPk + 4*(t & 1)
        ops = []
        for r in range(8): ops.append(f"v_exp_f32 v{vE+r}, -v{A+r}")
        for r in range(8): ops.append(f"v_fma_f32 v{vE+r}, v{vE+r}, s{sLG}, s{sLG}")
        for r in range(8): ops.append(f"v_rcp_f32 v{vE+r}, v{vE+r}")
        for r in range(8): ops.append(f"v_mul_f32 v{vE+r}, v{vE+r}, v{A+8+r}")
        for r in range(4): ops.append(f"v_cvt_pk_bf16_f32 v{pk+r}, v{vE+2*r}, v{vE+2*r+1}")
        return ops
    def act_store(t):
        if t == 4: a(f"s_add_u32 s{sAC}, s{sAC}, 0x1000")
        for va, fl in (((14, ""), (15, " sc1")) if t >= 7 - AL2 else ((vL16, " sc1"),)):
            a(f"buffer_store_dwordx4 {vr(vPk+4*(t&1),4)}, v{va}, {ws()}, s{sAC} offen offset:{(t%4)*1024}{fl}"); vm.issue(("st", t))
    def publish(n):
        a(f"s_waitcnt vmcnt({vm.cnt(('st', n-1))})\n" + flag(vFV + (n & 1), sAF)); vm.issue(); vm.issue()
    cost = lambda op: 8 if op.startswith(("v_exp", "v_rcp")) else 4
    for n in range(LA): a_read(n)
    pend = []
    PUB = {(4, 2): 2, (4, 30): 3, (5, 30): 4, (6, 30): 5} if AL2 < 7 else {(3, 27): 2, (4, 3): 3, (5, 3): 4, (6, 3): 5}
    for n, (t, s) in enumerate(seq):
        if t >= 2 and s == 4:
            for te in ([0, 1] if t == 2 else [t - 1]):
                pend += [("v", o) for o in epilogue(te)] + [("m", te)]
        w = f"lgkmcnt({min(LA - 1, len(seq) - 1 - n)})"
        if n < 64 and t == 0: w += f" vmcnt({vm.cnt(('hn', s))})"
        a("s_waitcnt " + w)
        if opt.get("pstamp") and ((s == 0 and t != 1) or (t, s) in ((0, 8), (0, 16))): stamp(1 + s//8 if t == 0 else t + 2, wait=False, inner=True)
        A = vAcc + 16*(t % 3)
        mf32(A, vAR + 4*(n % 8), vHN + 4*s, "0" if s == 0 else A)
        if n + LA < len(seq):
            if seq[n + LA] == (4, 0): a(f"s_waitcnt vmcnt({vm.cnt('h')})")
            if seq[n + LA] in ((4, 0), (5, 0)): a("s_barrier")
            a_read(n + LA)
        if t == 0 and s + HL < 32: hn_load(s + HL)
        if t == 1 and s in (20, 21):
            a(f"buffer_store_dwordx4 {vr(vH+4*(s-20),4)}, v{vHO2}, {ws()}, s26 offen offset:{512*(s-20)} sc1"); vm.issue("h")
        if (t, s) == (1, 31):
            a("s_barrier"); stamp(12, wait=False)
        if (t, s + 1) in PUB: a(f"v_mov_b32 v{vFV + (PUB[(t, s+1)] & 1)}, {PUB[(t, s+1)]}")
        if (t, s) in PUB: publish(PUB[(t, s)])
        elif pend and pend[0][0] == "m": act_store(pend.pop(0)[1])
        else:
            budget = 16
            while pend and pend[0][0] == "v" and budget >= cost(pend[0][1]):
                budget -= cost(pend[0][1]); a(pend.pop(0)[1])
        if s == 31: assert not pend or t < 2, (t, len(pend))
    stamp(13)
    a(f"v_mov_b32 v{vFV}, 6\ns_nop 10")
    for o in epilogue(6): a(o)
    act_store(6)
    publish(6)
    a(f"v_mov_b32 v{vFV+1}, 7")
    publish(7)
    if opt.get("wb"): a(f"s_cmp_lg_u32 s{sJ}, 0\ns_cbranch_scc1 kb_done\ns_waitcnt vmcnt(0)\nbuffer_wbl2 sc1")
    a("s_branch kb_done")
    a.label("kb_hn_far")
    hn_store(" sc1")
    a("s_branch kb_hn_back")
    slow_path("a")

    a.label("kb_grpb")
    a(f"s_setprio 3\ns_add_u32 s{sO2}, s{sO}, {WS_KV}")
    def kv_round(r):
        a(f"s_add_u32 m0, s{sO}, {r*4096}\ns_add_u32 s{sT}, s{sO2}, {r*4096}")
        a(f"buffer_load_dwordx4 v{vL16}, {ws()}, s{sT} offen lds")
    N1 = 12
    for r in range(N1): kv_round(r)
    vSA, vSD, vTR, vTD, vRO = 100, 101, 102, 103, 104
    sST, sD1, sD2, sS1, sS2 = 63, 26, 27, sT3, sMK
    srd(a, RA, 16, 512*3584); srd(a, RB, 18, 512*3584); srd(a, RD, 20, 1792*1024)
    a(f"""
    s_mul_i32 s{sST}, s{sJ}, 6144
    s_add_u32 s{sST}, s{sST}, {L_STG}
    v_lshrrev_b32 v{vT}, 3, v{vL}
    v_and_b32 v{vT2}, 7, v{vL}
    v_mul_u32_u24 v{vSA}, 3584, v{vT}
    v_lshl_add_u32 v{vSA}, v{vT2}, 4, v{vSA}
    v_lshlrev_b32 v{vSD}, 10, v{vT}
    v_lshl_add_u32 v{vSD}, v{vT2}, 4, v{vSD}
    s_lshl_b32 s{sCNT}, s2, 2
    s_add_u32 s{sCNT}, s{sCNT}, s{sJ}
    s_and_b32 s{sT2}, s{sCNT}, 31
    s_lshr_b32 s{sT}, s{sCNT}, 5
    s_lshl_b32 s{sD1}, s{sT}, 17
    s_lshl_b32 s{sS1}, s{sT}, 7
    s_lshl_b32 s{sT}, s{sT2}, 10
    s_add_u32 s{sD1}, s{sD1}, s{sT}
    s_add_u32 s{sD1}, s{sD1}, {WS_WGU}
    s_mul_i32 s{sT2}, s{sT2}, {16*3584}
    s_add_u32 s{sS1}, s{sS1}, s{sT2}
    s_and_b32 s{sT2}, s{sCNT}, 7
    s_lshr_b32 s{sT}, s{sCNT}, 3
    s_mul_i32 s{sD2}, s{sT2}, {2*FR}
    s_lshl_b32 s{sS2}, s{sT2}, 7
    s_lshl_b32 s{sT2}, s{sT}, 10
    s_add_u32 s{sD2}, s{sD2}, s{sT2}
    s_add_u32 s{sD2}, s{sD2}, {WS_WD}
    s_lshl_b32 s{sT}, s{sT}, 14
    s_add_u32 s{sS2}, s{sS2}, s{sT}
    v_bfe_u32 v{vT}, v{vL}, 2, 2
    v_lshrrev_b32 v{vT2}, 5, v{vL}
    v_lshl_add_u32 v{vT}, v{vT2}, 3, v{vT}
    v_lshl_add_u32 v{vTR}, v{vT}, 7, s{sST}
    v_bfe_u32 v{vT}, v{vL}, 1, 1
    v_lshl_add_u32 v{vTR}, v{vT}, 3, v{vTR}
    v_bfe_u32 v{vT}, v{vL}, 4, 1
    v_lshl_add_u32 v{vTD}, v{vT}, 4, v{vTR}
    v_lshl_add_u32 v{vTR}, v{vT}, 11, v{vTR}
    v_and_b32 v{vT}, 1, v{vL}
    v_lshl_add_u32 v{vTR}, v{vT}, 4, v{vTR}
    v_lshl_add_u32 v{vTD}, v{vT}, 5, v{vTD}
    """)
    attn_addrs(L_OXH)
    a(f"s_waitcnt vmcnt({N1 - R1})\ns_barrier")
    stamp(1)
    for r in range(N1, R3): kv_round(r)
    a(f"s_waitcnt vmcnt({R3 - R2})\ns_barrier")
    for i in range(6):
        r = (RA, RA, RB, RB, RD, RD)[i]
        base, step, va = (sS1, 8*3584, vSA) if i < 4 else (sS2, 8192, vSD)
        a(f"s_add_u32 m0, s{sST}, {i*1024}\ns_add_u32 s{sT}, s{base}, {step*(i&1)}\nbuffer_load_dwordx4 v{va}, s[{r}:{r+3}], s{sT} offen lds")
    for r in range(R3, 33): kv_round(r)
    a(f"s_waitcnt vmcnt({33 - R3})\ns_cmp_ge_u32 s2, 224\ns_cbranch_scc1 kb_rl_done")
    for b in range(6):
        for e in range(2):
            va, off = (vTR, e*512 + b*32) if b < 4 else (vTD, 4096 + e*512 + (b-4)*64)
            a(f"ds_read_b64_tr_b16 {vr(vRO+4*b+2*e,2)}, v{va} offset:{off}")
    for b in range(6):
        d = sD1 if b < 4 else sD2
        a(f"s_waitcnt lgkmcnt({10-2*b})")
        a(f"buffer_store_dwordx4 {vr(vRO+4*b,4)}, v{vL16}, {ws()}, s{d} offen sc1")
        if b not in (3, 5): a(f"s_add_u32 s{d}, s{d}, {0x8000 if b < 4 else FR}")
    a.label("kb_rl_done")
    a(f"""
    s_getreg_b32 s{sT2}, hwreg(HW_REG_XCC_ID, 0, 4)
    s_add_u32 s{sT2}, s{sT2}, 1
    s_lshl_b32 s{sT}, s{sGRP}, 5
    s_add_u32 s{sT}, s{sT}, s{sMEM}
    s_lshl_b32 s{sT}, s{sT}, 2
    s_add_u32 s{sT}, s{sT}, {WS_FLAG + FL_XID}
    v_mov_b32 v100, 1
    v_mov_b32 v101, 0
    v_mov_b32 v102, s{sT2}
    s_mov_b64 exec, 1
    s_cmp_lg_u32 s{sJ}, 0
    s_cbranch_scc1 kb_noxid
    buffer_store_dword v102, v101, {ws()}, s{sT} offen sc1
    """)
    a.label("kb_noxid")
    a("s_barrier"); stamp(2)
    a(f"""
    s_and_b32 s{sT}, s2, 31
    s_lshl_b32 s{sT}, s{sT}, 7
    s_add_u32 s{sT}, s{sT}, {WS_FLAG + FL_RL}
    s_waitcnt vmcnt(0)
    buffer_atomic_add v100, v101, {ws()}, s{sT} offen sc0 sc1
    v_mov_b32 v102, 1
    s_mov_b32 s{sT}, {WS_FLAG + FL_RL + 0x1000}
    s_waitcnt vmcnt(0)
    v_readfirstlane_b32 s{sT2}, v100
    s_cmp_lg_u32 s{sT2}, 31
    s_cbranch_scc1 kb_rl_sent
    buffer_atomic_add v102, v101, {ws()}, s{sT} offen sc0 sc1
    s_waitcnt vmcnt(0)
    v_readfirstlane_b32 s{sT2}, v102
    s_cmp_lg_u32 s{sT2}, 31
    s_cbranch_scc1 kb_rl_sent
    s_mov_b64 exec, 0xffff
    v_lshlrev_b32 v101, 7, v{vL}
    v_mov_b32 v102, 1
    buffer_store_dword v102, v101, {ws()}, s{sT} offen offset:2048 sc1
    """)
    a.label("kb_rl_sent")
    a(f"""
    s_mov_b64 exec, -1
    v_mov_b32 v115, 0
    v_mov_b32 v114, 0
    """)
    stamp(3)
    vW0, vW1, vWD, vAT, vAC4, vHh = 112, 113, 144, 80, 16, 8
    sWD, sAT = sO, sO2
    def wd_addrs():
        a(f"""
        s_and_b32 s{sT}, s{sJ}, 1
        s_mul_i32 s{sT2}, s{sT}, {FR}
        v_add_u32 v{vW0}, s{sT2}, v{vL16}
        s_sub_u32 s{sT2}, {FR}, s{sT2}
        v_add_u32 v{vW1}, s{sT2}, v{vL16}
        """)
    a(f"""
    s_and_b32 s{sT}, s{sMEM}, 7
    s_mul_i32 s{sWD}, s{sT}, {2*FR}
    s_mul_i32 s{sT}, s{sJ}, {28*1024}
    s_add_u32 s{sWD}, s{sWD}, s{sT}
    s_add_u32 s{sWD}, s{sWD}, {WS_WD}
    """)
    wd_addrs()
    vm = VM()
    def koff(u): return (7*(u & 3) + (u >> 2))*1024
    def wd_load(u):
        a(f"s_add_u32 s{sT}, s{sWD}, {koff(u)}")
        for n in range(2):
            a(f"buffer_load_dwordx4 {vr(vWD+8*(u%14)+4*n,4)}, v{(vW0, vW1)[n]}, {ws()}, s{sT} offen sc1")
            vm.issue(("w", u))
    def ready():
        a(f"s_lshl_b32 s{sT2}, s{sGRP}, 7\ns_add_u32 s{sT2}, s{sT2}, {WS_FLAG + FL_RL + 0x1800}")
        poll("rl", 114, 115, sT2, 1, None, sleep=4)
        stamp(4)
        for u in range(14): wd_load(u)
    def mid():
        a("s_barrier"); stamp(5)
    TX = -(-3*32768 // KVT) + 1
    a("s_setprio 1")
    attention("b", {opt.get("n0a", 1): lambda: (bar(), ready()), opt.get("n0", 2): mid, TX: bar}, {})
    stamp(6)
    gu_base()
    a("s_barrier")
    gu_dma(1)
    a("s_barrier")
    stamp(7)
    gu_dma(2); gu_dma(3)
    a("s_waitcnt vmcnt(8)\ns_barrier")
    stamp(8)
    a("s_waitcnt vmcnt(0)\ns_barrier")
    gu_dma(4)
    a(f"""
    v_bfe_u32 v4, v{vL}, 3, 2
    v_add_u32 v4, 3, v4
    v_lshlrev_b32 v4, 10, v4
    v_and_b32 v5, 7, v{vL}
    v_lshl_add_u32 v4, v5, 7, v4
    v_lshrrev_b32 v5, 5, v{vL}
    v_mul_u32_u24 v5, {FR}, v5
    v_add_u32 v4, v4, v5
    s_and_b32 s{sT}, s{sGRP}, 1
    s_lshl_b32 s{sT}, s{sT}, 1
    s_lshr_b32 s{sT2}, s{sMEM}, 3
    s_add_u32 s{sT}, s{sT}, s{sT2}
    s_mul_i32 s{sT}, s{sT}, {7*1024}
    s_add_u32 s{sT}, s{sT}, s{sWD}
    buffer_load_dword v5, v4, {ws()}, s{sT if not opt.get("nowdt") else sMK} offen sc1
    """)
    gu_dma(5); gu_dma(6)
    a("s_waitcnt vmcnt(17)")
    if opt.get("pstamp"): stamp(1, inner=True)
    a("s_barrier\ns_waitcnt vmcnt(16)")
    vW0, vW1, vA0_, vA1_, vPL4, vPA4 = 4, 5, 6, 7, 0, 3
    wd_addrs()
    sFA, sHH = sT3, 63
    a(f"""
    s_lshr_b32 s{sT}, s{sJ}, 1
    s_mul_i32 s{sT2}, s{sT}, {FR}
    v_add_u32 v{vA0_}, s{sT2}, v{vL16}
    s_sub_u32 s{sT2}, {FR}, s{sT2}
    v_add_u32 v{vA1_}, s{sT2}, v{vL16}
    s_lshr_b32 s{sT2}, s{sMEM}, 3
    s_lshl_b32 s{sCNT}, s{sGRP}, 1
    s_add_u32 s{sCNT}, s{sCNT}, s{sT2}
    s_lshl_b32 s{sCNT}, s{sCNT}, 1
    s_lshl_b32 s{sFA}, s{sCNT}, 8
    s_add_u32 s{sFA}, s{sFA}, {WS_FLAG + FL_ACT}
    s_mul_i32 s{sAT}, s{sCNT}, {FR}
    s_mul_i32 s{sT2}, s{sJ}, {28*1024}
    s_add_u32 s{sAT}, s{sAT}, s{sT2}
    s_add_u32 s{sAT}, s{sAT}, {WS_ACT}
    s_add_u32 s{sCNT}, s{sCNT}, s{sT}
    s_lshl_b32 s{sHH}, s{sCNT}, 15
    s_and_b32 s{sT}, s{sMEM}, 7
    s_lshl_b32 s{sT}, s{sT}, 1
    s_and_b32 s{sT2}, s{sJ}, 1
    s_add_u32 s{sT}, s{sT}, s{sT2}
    s_lshl_b32 s26, s{sT}, 6
    s_add_u32 s26, s26, s{sHH}
    s_lshl_b32 s{sT}, s{sT}, 11
    s_add_u32 s{sHH}, s{sHH}, s{sT}
    s_add_u32 s{sHH}, s{sHH}, {WS_H}
    s_lshl_b32 s{sT}, s{sJ}, 2
    s_lshl_b32 s{sMK}, 0xf000f, s{sT}
    v_and_b32 v{vPA4}, 15, v{vL}
    v_lshlrev_b32 v{vPA4}, 2, v{vPA4}
    v_bfe_u32 v16, v{vL}, 4, 1
    v_lshl_add_u32 v{vPA4}, v16, 8, v{vPA4}
    v_and_b32 v16, 31, v{vL}
    v_lshlrev_b32 v16, 4, v16
    v_lshrrev_b32 v17, 5, v{vL}
    v_lshl_add_u32 v16, v17, 10, v16
    v_mov_b32 v{vPL4}, 0
    s_waitcnt vmcnt(0)
    """)
    if opt.get("pstamp"): stamp(2, inner=True)
    a("s_barrier")
    stamp(9)
    poll("act0", vPL4, vPA4, sFA, 2, None)
    stamp(10)
    vm, lg = VM(), VM()
    blk = {("w", u): vWD + 8*u for u in range(14)}
    free = [vAT + 8*i for i in range(8)]
    for u in range(14): vm.pos[("w", u)] = 0
    for h in range(2):
        a(f"buffer_load_dwordx4 {vr(vHh+4*h,4)}, v16, {ws()}, s{sHH} offen offset:{512*h} sc1")
        vm.issue("h")
    def g_load(kind, u):
        r = blk[(kind, u)] = free.pop(0)
        a(f"s_add_u32 s{sT}, s{sAT if kind == 'a' else sWD}, {koff(u)}")
        for n in range(2):
            va = (vA0_, vA1_)[n] if kind == "a" else (vW0, vW1)[n]
            a(f"buffer_load_dwordx4 {vr(r+4*n,4)}, v{va}, {ws()}, s{sT} offen sc1")
            vm.issue((kind, u))
    THR = opt.get("thr", 10)
    for u in range(8):
        g_load("a", u)
        if vm.n > THR: a(f"s_waitcnt vmcnt({THR})")
    for i in range(8):
        a(f"v_lshlrev_b32 v{vAC4+2*i}, 16, v{vHh+i}\nv_and_b32 v{vAC4+2*i+1}, 0xffff0000, v{vHh+i}")
    assert vm.cnt("h") >= THR
    LW0, LW1 = 14, 22
    vLWD, vPN = 8, 9
    a(f"s_lshl_b32 s{sT2}, s{sJ}, 14\ns_add_u32 s{sT2}, s{sT2}, 0x8000\nv_add_u32 v{vLWD}, s{sT2}, v{vL16}")
    def poll_issue():
        a(f"buffer_load_dword v{vPN}, v{vPA4}, {ws()}, s{sFA} offen sc1"); vm.issue("p")
    for u in range(LW0, LW1):
        for n in range(2):
            a(f"s_add_u32 m0, s{sT2}, {(u-LW0)*2048 + n*1024}")
            a(f"s_add_u32 s{sT}, s{sWD}, {koff(u)}" if n == 0 else "s_nop 0")
            a(f"buffer_load_dwordx4 v{(vW0, vW1)[n]}, {ws()}, s{sT} offen sc1 lds"); vm.issue(("l", u))
        a(f"s_waitcnt vmcnt({THR})")
        if u == LW1 - 3: poll_issue()
    a(f"s_setprio {opt.get('p4prio', 0)}")
    GATE = {0: 3, 3: 4, 6: 5, 10: 6, 13: 7}
    PI, PR = {0: 3, 3: 6, 6: 10}, {-1: 0}
    if opt.get("sched") == 1: GATE, PI = {0: 3, 3: 4, 6: 5, 9: 6, 12: 7}, {1: 6, 6: 9, 9: 12}
    PR = {0} | set(PI.values())
    queue = sorted([("a", u) for u in range(8, 28)] + [("w", u) for u in range(LW1, 28)], key=lambda k: (k[1], k[0]))
    avail = 2
    LAH = opt.get("lah", 11)
    for u in range(28):
        w = f"vmcnt({min(63, vm.cnt(('a', u)), *([] if LW0 <= u < LW1 else [vm.cnt(('w', u))]))})"
        if LW0 <= u < LW1: w += f" lgkmcnt({lg.cnt(u)})"
        a("s_waitcnt " + w)
        if opt.get("pstamp") and u % 4 == 0 and u < 24: stamp(3 + u//4, wait=False, inner=True)
        for k in (1, 2, 3, 0):
            A = vAC4 + 16*k
            mf32(A, blk[("w", u)] + 4*(k & 1), blk[("a", u)] + 4*(k >> 1), "0" if (u == 0 and k) else A)
        free += [blk[("w", u)], blk[("a", u)]]
        if LW0 <= u + 2 < LW1:
            r = blk[("w", u+2)] = free.pop(0)
            if u + 2 == LW0: a(f"s_waitcnt vmcnt({min(63, vm.cnt(('l', LW1-1)))})")
            for n in range(2):
                a(f"ds_read_b128 {vr(r+4*n,4)}, v{vLWD} offset:{(u+2-LW0)*2048 + n*1024}"); lg.issue(u + 2)
        if u in PR: a(f"s_waitcnt vmcnt({vm.cnt('p')})\nv_max_u32 v{vPL4}, v{vPL4}, v{vPN}")
        if u in GATE:
            avail = GATE[u]
            poll(f"act{avail}", vPL4, vPA4, sFA, avail, sMK)
            if avail == 7: stamp(11)
        if u in PI: poll_issue()
        if u == 20: a("s_barrier")
        for key in list(queue):
            if not free or key[1] > u + LAH: break
            if key[0] == "a" and key[1] >= 4*avail: continue
            g_load(*key); queue.remove(key)
    assert not queue
    stamp(12)
    for k in range(1, 4):
        a(f"s_xor_b32 s{sT}, s{sJ}, {k}\ns_mul_i32 s{sT}, s{sT}, {3*4096}\ns_add_u32 s{sT}, s{sT}, {L_RED + (k-1)*4096}")
        a(f"v_add_u32 v{4+k}, s{sT}, v{vL16}")
    a(f"s_mul_i32 s{sT}, s{sJ}, {3*4096}\ns_add_u32 s{sT}, s{sT}, {L_RED}\nv_add_u32 v4, s{sT}, v{vL16}")
    for k in range(1, 4):
        for q in range(4):
            a(f"ds_write_b128 v{4+k}, {vr(vAC4+16*k+4*q,4)} offset:{q*1024}")
    srd(a, OUT, 22, 2048*1024)
    a(f"""
    v_and_b32 v8, 31, v{vL}
    v_lshlrev_b32 v8, 10, v8
    v_lshrrev_b32 v9, 5, v{vL}
    v_lshl_add_u32 v8, v9, 5, v8
    s_waitcnt lgkmcnt(0)
    s_barrier
    """)
    stamp(13)
    for q in range(4):
        for k in range(3):
            a(f"ds_read_b128 {vr(32+16*k+4*q,4)}, v4 offset:{k*4096 + q*1024}")
    for q in range(4):
        a(f"s_waitcnt lgkmcnt({9-3*q})")
        for r in range(4*q, 4*q + 4):
            a(f"v_add_f32 v{vAC4+r}, v{vAC4+r}, v{32+r}\nv_add_f32 v{48+r}, v{48+r}, v{64+r}")
        for r in range(4*q, 4*q + 4): a(f"v_add_f32 v{vAC4+r}, v{vAC4+r}, v{48+r}")
        for r in range(2*q, 2*q + 2): a(f"v_cvt_pk_bf16_f32 v{80+r}, v{vAC4+2*r}, v{vAC4+2*r+1}")
        if q & 1:
            a(f"buffer_store_dwordx4 {vr(80+4*(q>>1),4)}, v8, s[{OUT}:{OUT+3}], s26 offen offset:{16*(q>>1)}" + (" sc1" if opt.get("outsc1") else ""))
    a("s_branch kb_done")
    slow_path("b")

    a.label("kb_done")
    if opt.get("stamp"):
        a("s_waitcnt vmcnt(0)")
        stamp(14)
        a(f"""
        s_lshl_b32 s{sT}, s2, 3
        s_add_u32 s{sT}, s{sT}, s{sW}
        s_lshl_b32 s{sT}, s{sT}, 6
        s_add_u32 s{sT}, s{sT}, {WS_DBG + 0x10000}
        v_mov_b32 v1, 0
        """)
        for i in range(16): a(f"v_mov_b32 v{4+i}, s{64+2*min(i,14)}")
        for i in range(4): a(f"buffer_store_dwordx4 {vr(4+4*i,4)}, v1, {ws()}, s{sT} offen offset:{16*i}")
    if opt.get("dstamp"):
        w = opt["dstamp"] - 1
        a(f"""
        s_cmp_lg_u32 s2, 100
        s_cbranch_scc1 kb_exit
        s_cmp_lg_u32 s{sW}, {w}
        s_cbranch_scc1 kb_exit
        s_load_dwordx2 s[4:5], s[0:1], 80
        s_waitcnt lgkmcnt(0) vmcnt(0)
        s_mov_b32 s6, 256
        s_mov_b32 s7, 0x00020000
        s_mov_b32 s8, {WS_DBG + 100*8*32}
        buffer_load_dwordx4 v[24:27], v1, {ws()}, s8 offen
        buffer_load_dwordx4 v[28:31], v1, {ws()}, s8 offen offset:16
        s_waitcnt vmcnt(0)
        """)
        for i in list(range(4, 20)) + [25, 26, 31]: a(f"v_sub_u32 v{i}, v{i}, v24")
        a("""
        buffer_store_dword v25, v1, s[4:7], 0 offen
        buffer_store_dword v26, v1, s[4:7], 0 offen offset:4
        buffer_store_dword v31, v1, s[4:7], 0 offen offset:8
        """)
        for i in range(13): a(f"buffer_store_dword v{4+(i if i < 12 else 14)+(1 if 0 < i < 12 else 0)}, v1, s[4:7], 0 offen offset:{12+4*i}")
    a.label("kb_exit")
    a("s_endpgm")
```

```python
from asmlib import *
from layout import *
from ka import srd

KB_LDS = 163840
L_STG = 135168
L_OXH = L_STG
L_OXL = 159744
L_LNS = 162816
L_RED = 98304
FR = 114688
SPIN = 1 << 15

STAMPS = {"w0-3": ["start", "B1", "attn", "B4", "st1", "B5", "st2", "B6", "stored", "acked", "BA", "seen", "BB", "T0", "end"],
          "w4-7": ["start", "B1", "B3", "rl", "rlseen", "B4", "attn", "B6", "BA", "BC", "seen0", "seen6", "mm", "red", "end"]}

WS, X, OUT, RA, RB, RD = 28, 32, 36, 40, 44, 48
sW, sJ, sGRP, sMEM, sT, sT2, sT3, sO, sO2, sCNT, sMK, sMODE = 52, 53, 54, 55, 56, 57, 58, 59, 60, 61, 62, 98
vL, vL16, vT, vT2 = 1, 2, 3, 0

vQ, vK, vV, vP, vKA, vVA, vOXW, vIX, vS, vO, vC = 4, 8, 16, 32, 40, 43, 46, 47, 48, 80, 96

class VM:
    def __init__(self): self.n = 0; self.pos = {}
    def issue(self, key=None):
        self.n += 1
        if key is not None: self.pos[key] = self.n
    def cnt(self, key): return self.n - self.pos[key]

def ws(): return f"s[{WS}:{WS+3}]"

def gen_kb(a, name, opt):
    def stamp(i, wait=True, inner=False):
        if opt.get("astamp") and 7 <= i <= 13 and not inner: return
        if opt.get("pstamp") and 1 <= i <= 8 and not inner: return
        if opt.get("stamp"):
            a(f"{'s_memtime' if opt.get('cyc') else 's_memrealtime'} s[{64+2*i}:{65+2*i}]")
            if wait: a("s_waitcnt lgkmcnt(0)")
    def mf32(d, x, y, c): a(f"v_mfma_f32_32x32x16_bf16 {vr(d,16)}, {vr(x,4)}, {vr(y,4)}, {c if isinstance(c,str) else vr(c,16)}")

    def sm32(x, y): a(f"v_smfmac_f32_32x32x32_bf16 {vr(vO,16)}, {vr(x,4)}, {vr(y,8)}, v{vIX}")
    def attention(tag, hooks, extras):
        lg = VM()
        def rd_k(t):
            if t >= 64: return
            b, o = divmod(t, 30)
            a(f"ds_read_b128 {vr(vK+4*(t&1),4)}, v{vKA+b} offset:{o*KVT}"); lg.issue(("k", t))
        def rd_v(t, u):
            if t >= 64: return
            b, o = divmod(t, 30)
            a(f"ds_read_b128 {vr(vV+8*(t&1)+4*u,4)}, v{vVA+b} offset:{o*KVT+u*VH}"); lg.issue(("v", t, u))
        rd_k(0); rd_k(1); rd_v(0, 0); rd_v(0, 1); rd_v(1, 0)
        a(f"s_waitcnt lgkmcnt({lg.cnt(('k', 0))})")
        mf32(vS, vK, vQ, "0")
        rd_k(2)
        a("s_nop 10")
        for t in range(64):
            S, N = vS + 16*(t & 1), vS + 16*((t+1) & 1)
            ex = list(extras.get(t, []))
            def e(*idx):
                for i in idx: a(f"v_exp_f32 v{S+i}, v{S+i}")
            def extra():
                if ex: ex.pop(0)()
            if opt.get("astamp") and t and t % 8 == 0: stamp(6 + t//8, wait=False, inner=True)
            if t in hooks: hooks[t]()
            e(0, 1)
            need = [("v", t, 0)] + ([("v", t-1, 1)] if t else []) + ([("k", t+1)] if t < 63 else [])
            a(f"s_waitcnt lgkmcnt({min(lg.cnt(k) for k in need)})")
            if t > 0: sm32(vV + 8*((t-1) & 1) + 4, N + 8)
            rd_v(t + 1, 1); extra()
            e(2, 3, 4)
            if t < 63: mf32(N, vK + 4*((t+1) & 1), vQ, "0")
            rd_k(t + 3); extra()
            e(5, 6, 7, 8, 9)
            sm32(vV + 8*(t & 1), S)
            rd_v(t + 2, 0); extra()
            e(10, 11, 12, 13, 14, 15)
            assert not ex
        a("s_waitcnt lgkmcnt(0)\ns_nop 0")
        sm32(vV + 8 + 4, vS + 16 + 8)
        a(f"""
        s_mov_b32 s{sT}, {f32(2.0**-64)}
        s_mov_b32 s{sT2}, {f32(2.0**64)}
        s_nop 11
        v_cmp_lt_f32 vcc, s{sT}, v{vO+8}
        v_cmp_gt_f32 s[96:97], s{sT2}, v{vO+8}
        v_rcp_f32 v{vT}, v{vO+8}
        s_and_b64 vcc, vcc, s[96:97]
        s_cmp_eq_u64 vcc, -1
        s_cbranch_scc0 slow_{tag}
        """)
        a.label(f"norm_{tag}")
        for r in range(8): a(f"v_mul_f32 v{vO+r}, v{vO+r}, v{vT}")
        for r in range(4): a(f"v_cvt_pk_bf16_f32 v{vP+r}, v{vO+2*r}, v{vO+2*r+1}")
        a(f"ds_write_b128 v{vOXW}, {vr(vP,4)}\ns_waitcnt lgkmcnt(0)")

    def slow_path(tag):
        a.label(f"slow_{tag}")
        vM = vC
        a(f"v_mov_b32 v{vM}, 0xff800000\ns_mov_b32 s{sT}, {WS_KV}")
        a.label(f"slow1_{tag}")
        a(f"buffer_load_dwordx4 {vr(vK,4)}, v{vKA}, {ws()}, s{sT} offen\ns_waitcnt vmcnt(0)")
        mf32(vS, vK, vQ, "0")
        a(f"s_add_u32 s{sT}, s{sT}, {KVT}\ns_nop 11")
        for r in range(8): a(f"v_max3_f32 v{vM}, v{vM}, v{vS+2*r}, v{vS+2*r+1}")
        a(f"""
        s_cmp_lg_u32 s{sT}, {WS_KV + 64*KVT}
        s_cbranch_scc1 slow1_{tag}
        v_mov_b32 v{vM+1}, v{vM}
        s_nop 1
        v_permlane32_swap_b32 v{vM}, v{vM+1}
        v_max_f32 v{vM}, v{vM}, v{vM+1}
        v_sub_f32 v{vM}, 0, v{vM}
        """)
        for r in range(1, 16): a(f"v_mov_b32 v{vM+r}, v{vM}")
        for r in range(16): a(f"v_mov_b32 v{vO+r}, 0")
        a(f"s_mov_b32 s{sT}, {WS_KV}")
        a.label(f"slow2_{tag}")
        a(f"""
        buffer_load_dwordx4 {vr(vK,4)}, v{vKA}, {ws()}, s{sT} offen
        buffer_load_dwordx4 {vr(vV,4)}, v{vVA}, {ws()}, s{sT} offen
        buffer_load_dwordx4 {vr(vV+4,4)}, v{vVA}, {ws()}, s{sT} offen offset:{VH}
        s_waitcnt vmcnt(0)
        """)
        mf32(vS, vK, vQ, vM)
        a(f"s_add_u32 s{sT}, s{sT}, {KVT}\ns_nop 11")
        for r in range(16): a(f"v_exp_f32 v{vS+r}, v{vS+r}")
        a("s_nop 1")
        sm32(vV, vS)
        sm32(vV + 4, vS + 8)
        a(f"""
        s_nop 15
        s_cmp_lg_u32 s{sT}, {WS_KV + 64*KVT}
        s_cbranch_scc1 slow2_{tag}
        v_rcp_f32 v{vT}, v{vO+8}
        s_branch norm_{tag}
        """)

    def poll(tag, vdst, vaddr, soff, need, mask, sleep=0):
        a(f"s_mov_b32 s{sCNT}, {SPIN}")
        a.label(f"poll_{tag}")
        a(f"v_cmp_le_u32 vcc, {need}, v{vdst}\ns_sub_u32 s{sCNT}, s{sCNT}, 1\ns_cbranch_scc1 done_{tag}")
        if mask is None:
            a("s_cmp_eq_u64 vcc, -1")
        else:
            a(f"s_and_b32 s{sT}, vcc_lo, s{mask}\ns_cmp_eq_u32 s{sT}, s{mask}")
        a(f"s_cbranch_scc1 done_{tag}")
        if sleep: a(f"s_sleep {sleep}")
        a(f"buffer_load_dword v{vdst}, v{vaddr}, {ws()}, s{soff} offen sc1\ns_waitcnt vmcnt(0)")
        a(f"s_branch poll_{tag}")
        a.label(f"done_{tag}")

    a.label(name)
    a(f"""
    s_cmp_ge_u32 s2, 256
    s_cbranch_scc1 kb_exit
    s_load_dwordx2 s[24:25], s[0:1], 88
    s_load_dwordx16 s[4:19], s[0:1], 0
    s_load_dwordx4 s[20:23], s[0:1], 64
    """)
    stamp(0, wait=False)
    a(f"""
    v_lshrrev_b32 v{vT}, 6, v0
    v_and_b32 v{vL}, 63, v0
    s_lshr_b32 s{sT}, s2, 3
    v_readfirstlane_b32 s{sW}, v{vT}
    s_and_b32 s{sMEM}, s{sT}, 15
    s_lshr_b32 s{sT}, s{sT}, 4
    s_and_b32 s{sGRP}, s2, 7
    s_lshl_b32 s{sGRP}, s{sGRP}, 1
    s_add_u32 s{sGRP}, s{sGRP}, s{sT}
    v_lshlrev_b32 v{vL16}, 4, v{vL}
    s_and_b32 s{sJ}, s{sW}, 3
    s_lshl_b32 s{sT}, s{sGRP}, 4
    s_add_u32 s{sT}, s{sT}, s{sMEM}
    s_lshl_b32 s{sT}, s{sT}, 3
    s_add_u32 s{sT}, s{sT}, s{sW}
    s_lshl_b32 s{sT}, s{sT}, 10
    s_lshl_b32 s{sO}, s{sJ}, 10
    s_waitcnt lgkmcnt(0)
    """)
    srd(a, WS, 24, WS_SIZE)
    a(f"""
    buffer_load_dwordx4 {vr(vQ,4)}, v{vL16}, {ws()}, s{sT} offen
    s_cmp_ge_u32 s{sW}, 4
    s_cbranch_scc1 kb_grpb
    """)
    def attn_addrs(oxbase):
        a(f"""
        v_mov_b32 v{vKA}, v{vL16}
        v_add_u32 v{vKA+1}, {30*KVT}, v{vL16}
        v_add_u32 v{vKA+2}, {60*KVT}, v{vL16}
        v_lshrrev_b32 v{vT}, 5, v{vL}
        v_and_b32 v{vVA}, 15, v{vL}
        v_lshlrev_b32 v{vVA}, 4, v{vVA}
        v_lshl_add_u32 v{vVA}, v{vT}, 8, v{vVA}
        s_mov_b32 exec_lo, 0xffff0000
        s_mov_b32 exec_hi, 0xffff0000
        v_mov_b32 v{vVA}, 0x210
        s_mov_b32 exec_lo, 0x00110000
        s_mov_b32 exec_hi, 0x00110000
        v_mov_b32 v{vVA}, 0x200
        s_mov_b64 exec, -1
        v_mov_b32 v{vIX}, 0xdddddddd
        v_add_u32 v{vVA}, 0x400, v{vVA}
        v_add_u32 v{vVA+1}, {30*KVT}, v{vVA}
        v_add_u32 v{vVA+2}, {60*KVT}, v{vVA}
        s_lshl_b32 s{sT}, s{sJ}, 10
        s_add_u32 s{sT}, s{sT}, {oxbase}
        v_lshl_add_u32 v{vOXW}, v{vT}, 7, s{sT}
        v_bfe_u32 v{vT}, v{vL}, 3, 2
        v_lshl_add_u32 v{vOXW}, v{vT}, 8, v{vOXW}
        v_and_b32 v{vT}, 7, v{vL}
        v_lshl_add_u32 v{vOXW}, v{vT}, 4, v{vOXW}
        """)
        for r in range(16): a(f"v_mov_b32 v{vO+r}, 0")
    R1, R2 = opt.get("r1", 3), opt.get("r2", 10)
    def first_tile_needing(nbytes):
        for t in range(64):
            if (t + 3)*KVT + 1024 > nbytes: return t
    R3 = 22
    TB2, TB3, TB4 = first_tile_needing(R1*4096), first_tile_needing(R2*4096), first_tile_needing(R3*4096)

    a(f"s_setprio 2\ns_lshl_b32 s{sO}, s{sJ}, 17\ns_add_u32 s{sO}, s{sO}, {WS_WO}")
    attn_addrs(L_OXL)
    a("s_waitcnt vmcnt(0)\ns_barrier")
    stamp(1)
    vAc, vB, vOXR, vHO, vLW, vLR, vFO, vWR = 8, 40, 52, 53, 54, 55, 56, 59
    wreg = lambda f: 64 + 4*((f + 12) % 48)
    vm = VM()
    def wo_load(f):
        if f and f % 4 == 0: a(f"s_add_u32 s{sO}, s{sO}, 0x1000")
        a(f"buffer_load_dwordx4 {vr(wreg(f),4)}, v{vL16}, {ws()}, s{sO} offen offset:{(f%4)*1024}"); vm.issue(f)
    TRY = opt.get("try", 22)
    bar = lambda: a("s_barrier")
    extras = {TRY + i: [lambda f=2*i: wo_load(f), lambda f=2*i+1: wo_load(f)] for i in range(18)}
    attention("a", {TB2: bar, TB3: bar, TB4: bar}, extras)
    stamp(2)
    a(f"s_setprio {opt.get('hprio', 2)}\ns_barrier")
    stamp(3)
    srd(a, X, 4, 2048*1024)
    a(f"""
    v_and_b32 v{vT}, 7, v{vL}
    v_lshrrev_b32 v{vT2}, 4, v{vL}
    v_lshlrev_b32 v60, 10, v{vT}
    v_lshl_add_u32 v60, v{vT2}, 6, v60
    s_lshl_b32 s{sT}, s{sGRP}, 4
    s_add_u32 s{sT}, s{sT}, s{sMEM}
    s_lshl_b32 s{sT}, s{sT}, 13
    s_lshl_b32 s{sT2}, s{sJ}, 8
    s_add_u32 s{sT}, s{sT}, s{sT2}
    """)
    vX = wreg(44)
    for i in range(4): a(f"buffer_load_dwordx4 {vr(vX+4*i,4)}, v60, s[{X}:{X+3}], s{sT} offen offset:{16*i}")
    a(f"""
    v_and_b32 v61, 15, v{vL}
    v_lshlrev_b32 v61, 2, v61
    s_lshl_b32 s{sT}, s{sGRP}, 7
    s_add_u32 s{sT}, s{sT}, {WS_FLAG + FL_XID}
    buffer_load_dword v62, v61, {ws()}, s{sT} offen sc1
    """)
    for f in range(36, 44): wo_load(f)
    a(f"""
    v_lshlrev_b32 v{vLR}, 4, v{vT}
    v_lshl_add_u32 v{vOXR}, v{vT2}, 7, v{vLR}
    v_add_u32 v{vOXR}, {L_OXH}, v{vOXR}
    v_lshrrev_b32 v{vT2}, 3, v{vL}
    v_lshl_add_u32 v{vHO}, v{vT2}, 10, v{vLR}
    v_add_u32 v{vLR}, {L_LNS}, v{vLR}
    v_lshrrev_b32 v{vT2}, 5, v{vL}
    v_lshl_add_u32 v{vLW}, v{vT2}, 7, v{vLR}
    s_lshl_b32 s{sT}, s{sJ}, 2
    v_add_u32 v{vLW}, s{sT}, v{vLW}
    s_lshl_b32 s{sCNT}, s{sJ}, 14
    s_add_u32 s{sCNT}, s{sCNT}, 0x8000
    v_add_u32 v{vWR}, s{sCNT}, v{vL16}
    s_getreg_b32 s{sT}, hwreg(HW_REG_XCC_ID, 0, 4)
    s_add_u32 s{sT}, s{sT}, 1
    s_waitcnt vmcnt(8)
    v_cmp_eq_u32 vcc, s{sT}, v62
    v_mov_b32 v{vFO}, 0x40000000
    v_mov_b32 v{vFO+1}, 0x40000000
    s_cmp_eq_u64 vcc, -1
    s_cselect_b32 s{sMODE}, {0 if opt.get("slowmode") else 1}, 0
    s_cmp_eq_u32 s{sMODE}, 1
    s_cselect_b32 s{sT}, 0, 0x40000000
    s_cselect_b32 s{sT2}, 0x40000000, 0
    v_writelane_b32 v{vFO}, s{sT}, 0
    v_writelane_b32 v{vFO+1}, s{sT2}, 0
    """)
    for i in range(16):
        a(f"v_lshlrev_b32 v{vAc+2*i}, 16, v{vX+i}\nv_and_b32 v{vAc+2*i+1}, 0xffff0000, v{vX+i}")
    for f in range(44, 48): wo_load(f)
    a(f"""
    s_mul_i32 s{sMK}, s{sMEM}, {7*32768}
    s_and_b32 s{sT2}, s{sGRP}, 1
    s_lshl_b32 s{sT2}, s{sT2}, 2
    s_add_u32 s{sT2}, s{sT2}, s{sJ}
    s_mul_i32 s{sT2}, s{sT2}, {24*1024}
    s_add_u32 s{sMK}, s{sMK}, s{sT2}
    s_add_u32 s{sMK}, s{sMK}, {WS_WGU + 32768}
    v_mov_b32 v63, 0x40000000
    s_mov_b64 exec, 0xffff
    v_lshlrev_b32 v63, 7, v{vL}
    s_mov_b64 exec, -1
    """)
    def oproj(k0):
        lg = VM()
        def ox_read(ks):
            off = (L_OXL - L_OXH) + ks*512 if ks < 8 else (ks - 8)*512
            a(f"ds_read_b128 {vr(vB+4*(ks%3),4)}, v{vOXR} offset:{off}"); lg.issue(("o", ks))
        ox_read(k0); ox_read(k0 + 1)
        for ks in range(k0, k0 + 8):
            a(f"s_waitcnt lgkmcnt({lg.cnt(('o', ks))})" + (f" vmcnt({vm.cnt(8*ks+7)})" if ks < 8 else ""))
            for jt in range(8):
                f = 8*ks + jt
                a(f"v_mfma_f32_16x16x32_bf16 {vr(vAc+4*jt,4)}, {vr(wreg(f),4)}, {vr(vB+4*(ks%3),4)}, {vr(vAc+4*jt,4)}")
                if jt == 0 and ks + 2 < k0 + 8: ox_read(ks + 2)
                if f + 48 < 112:
                    wo_load(f + 48)
                    if f % 5 == 2 and f//5 < 12:
                        a(f"buffer_load_dword v62, v63, {ws()}, s{sMK} offen offset:{(f//5 & 1)*2048} sc1"); vm.issue()
                        if f//5 & 1: a(f"s_add_u32 s{sMK}, s{sMK}, 0x1000")
                elif 72 <= f < 104 and f & 1:
                    g = 112 + (f - 72)//2
                    a(f"ds_read_b128 {vr(wreg(g),4)}, v{vWR} offset:{(g-112)*1024}"); lg.issue()
    oproj(0)
    stamp(4)
    slot = [0, 3, 1, 2, 4, 0, 3]
    sG = 63
    def gu_base():
        a(f"""
        s_mul_i32 s{sG}, s{sMEM}, {7*32768}
        s_lshl_b32 s{sT3}, s{sJ}, 13
        s_add_u32 s{sG}, s{sG}, s{sT3}
        s_add_u32 s{sG}, s{sG}, {WS_WGU}
        """)
    def gu_dma(t):
        for i in range(8):
            if i % 4 == 0:
                a(f"s_add_u32 m0, s{sT3}, {slot[t]*32768 + (i//4)*4096}\ns_add_u32 s{sT}, s{sG}, {t*32768 + (i//4)*4096}")
            a(f"buffer_load_dwordx4 v{vL16}, {ws()}, s{sT} offen offset:{(i%4)*1024} sc1 lds")
    sHN, sFL = sO2, 27
    a(f"""
    s_lshl_b32 s{sT}, s{sGRP}, 2
    s_lshr_b32 s{sT2}, s{sMEM}, 2
    s_add_u32 s{sT}, s{sT}, s{sT2}
    s_lshl_b32 s{sFL}, s{sT}, 8
    s_lshl_b32 s{sHN}, s{sT}, 15
    s_lshl_b32 s{sT}, s{sJ}, 13
    s_add_u32 s{sHN}, s{sHN}, s{sT}
    s_and_b32 s{sT2}, s{sMEM}, 3
    s_lshl_b32 s{sT}, s{sT2}, 7
    s_add_u32 s{sHN}, s{sHN}, s{sT}
    s_add_u32 s{sHN}, s{sHN}, {WS_HN}
    s_lshl_b32 s{sT2}, s{sT2}, 2
    s_add_u32 s{sT2}, s{sT2}, s{sJ}
    s_lshl_b32 s{sT2}, s{sT2}, 2
    s_add_u32 s{sFL}, s{sFL}, s{sT2}
    s_add_u32 s{sFL}, s{sFL}, {WS_FLAG + FL_HN}
    s_add_u32 s{sT}, s{sFL}, {FL_ACT - FL_HN}
    buffer_load_dword v62, v{vHO}, {ws()}, s{sHN} offen sc1
    buffer_load_dword v62, v{vHO}, {ws()}, s{sHN} offen offset:512 sc1
    buffer_load_dword v62, v{vFO}, {ws()}, s{sFL} offen sc1
    buffer_load_dword v62, v{vFO}, {ws()}, s{sT} offen sc1
    """)
    AL2 = opt.get("actl2", 2)
    if AL2:
        a(f"""
        s_lshl_b32 s{sT}, s{sGRP}, 2
        s_add_u32 s{sT}, s{sT}, s{sJ}
        s_mul_i32 s{sT}, s{sT}, {FR}
        s_mul_i32 s{sT2}, s{sMEM}, {7*1024}
        s_add_u32 s{sT}, s{sT}, s{sT2}
        s_add_u32 s{sT}, s{sT}, {WS_ACT + (7 - AL2)*1024}
        v_lshlrev_b32 v63, 7, v{vL}
        s_mov_b32 exec_lo, {((1 << 8*AL2) - 1) & 0xffffffff:#x}
        s_mov_b32 exec_hi, {((1 << 8*AL2) - 1) >> 32:#x}
        buffer_load_dword v62, v63, {ws()}, s{sT} offen sc1
        s_mov_b64 exec, -1
        """)
    gu_base()
    a("s_barrier")
    for i in range(16):
        if i % 4 == 0: a(f"s_add_u32 m0, s{sCNT}, {i*1024}\ns_add_u32 s{sO}, s{sO}, 0x1000")
        a(f"buffer_load_dwordx4 v{vL16}, {ws()}, s{sO} offen offset:{(i%4)*1024} lds")
    gu_dma(0)
    a("s_waitcnt vmcnt(0)\ns_setprio 3\ns_barrier")
    stamp(5)
    oproj(8)
    stamp(6)
    a("s_nop 2\ns_mov_b32 exec_lo, 0xff00ff00\ns_mov_b32 exec_hi, 0xff00ff00")
    for i in range(16): a(f"v_mov_b32 v{vAc+i}, v{vAc+16+i}")
    a("s_mov_b64 exec, -1")
    s0, s1, q0, q1, vH, vN = 64, 65, 66, 67, 120, 80
    a(f"v_add_f32 v{s0}, v{vAc}, v{vAc+2}\nv_add_f32 v{s1}, v{vAc+1}, v{vAc+3}")
    a(f"v_mul_f32 v{q0}, v{vAc}, v{vAc}\nv_mul_f32 v{q1}, v{vAc+1}, v{vAc+1}")
    for i in range(2, 16):
        if i >= 4: a(f"v_add_f32 v{s0+(i&1)}, v{s0+(i&1)}, v{vAc+i}")
        a(f"v_fmac_f32 v{q0+(i&1)}, v{vAc+i}, v{vAc+i}")
    a(f"""
    v_add_f32 v{s0}, v{s0}, v{s1}
    v_add_f32 v{q0}, v{q0}, v{q1}
    v_cvt_pk_bf16_f32 v{vH}, v{vAc}, v{vAc+1}
    v_cvt_pk_bf16_f32 v{vH+1}, v{vAc+2}, v{vAc+3}
    v_permlane32_swap_b32 v{s0}, v{q0}
    v_add_f32 v{s0}, v{s0}, v{q0}
    v_cvt_pk_bf16_f32 v{vH+2}, v{vAc+4}, v{vAc+5}
    v_cvt_pk_bf16_f32 v{vH+3}, v{vAc+6}, v{vAc+7}
    v_add_f32_dpp v{s0}, v{s0}, v{s0} row_ror:8 row_mask:0xf bank_mask:0xf
    v_mov_b32 v{s1}, v{s0}
    v_cvt_pk_bf16_f32 v{vH+4}, v{vAc+8}, v{vAc+9}
    v_cvt_pk_bf16_f32 v{vH+5}, v{vAc+10}, v{vAc+11}
    v_permlane16_swap_b32 v{s0}, v{s1}
    v_add_f32 v{s0}, v{s0}, v{s1}
    ds_write_b32 v{vLW}, v{s0}
    v_cvt_pk_bf16_f32 v{vH+6}, v{vAc+12}, v{vAc+13}
    v_cvt_pk_bf16_f32 v{vH+7}, v{vAc+14}, v{vAc+15}
    s_waitcnt lgkmcnt(0)
    s_barrier
    """)
    stamp(7)
    a(f"""
    ds_read_b128 v[64:67], v{vLR}
    ds_read_b128 v[68:71], v{vLR} offset:128
    s_add_u32 s26, s{sHN}, {WS_H - WS_HN}
    v_mov_b32 v58, 1
    s_waitcnt lgkmcnt(0)
    v_add_f32 v64, v64, v65
    v_add_f32 v68, v68, v69
    v_add_f32 v66, v66, v67
    v_add_f32 v70, v70, v71
    v_add_f32 v64, v64, v66
    v_add_f32 v68, v68, v70
    v_mul_f32 v64, {f32(1/512)}, v64
    v_mul_f32 v68, {f32(1/512)}, v68
    v_fma_f32 v68, -v64, v64, v68
    v_max_f32 v68, 0, v68
    v_add_f32 v68, {f32(1e-5)}, v68
    v_rsq_f32 v68, v68
    s_nop 0
    v_mul_f32 v68, {f32(LOG2E)}, v68
    v_mul_f32 v64, v64, v68
    """)
    for i in range(16): a(f"v_fma_f32 v{vAc+i}, v{vAc+i}, v68, -v64")
    a(f"s_cmp_eq_u32 s{sMODE}, 1")
    for i in range(8): a(f"v_cvt_pk_bf16_f32 v{vN+i}, v{vAc+2*i}, v{vAc+2*i+1}")
    a("s_cbranch_scc0 kb_hn_far")
    def hn_store(fl):
        for h in range(2): a(f"buffer_store_dwordx4 {vr(vN+4*h,4)}, v{vHO}, {ws()}, s{sHN} offen offset:{512*h}{fl}")
    hn_store("")
    a.label("kb_hn_back")
    stamp(8)
    vPL, vPA, vA0, vAcc, vAR, vE, vPk, vHN = 4, 5, 6, 16, 64, 96, 112, 128
    sAC, sAF = sO, sMK
    a(f"""
    s_lshl_b32 s{sT}, s{sGRP}, 2
    s_add_u32 s{sT}, s{sT}, s{sJ}
    s_mul_i32 s{sAC}, s{sT}, {FR}
    s_mul_i32 s{sT2}, s{sMEM}, {7*1024}
    s_add_u32 s{sAC}, s{sAC}, s{sT2}
    s_add_u32 s{sAC}, s{sAC}, {WS_ACT}
    s_lshl_b32 s{sG}, s{sT}, 15
    s_add_u32 s{sG}, s{sG}, {WS_HN}
    s_lshl_b32 s{sT}, s{sT}, 8
    s_lshl_b32 s{sT2}, s{sMEM}, 2
    s_add_u32 s{sAF}, s{sT}, s{sT2}
    s_add_u32 s{sAF}, s{sAF}, {WS_FLAG + FL_ACT}
    s_add_u32 s{sT2}, s{sT}, {WS_FLAG + FL_HN}
    v_and_b32 v{vPA}, 15, v{vL}
    v_lshlrev_b32 v{vPA}, 2, v{vPA}
    v_mov_b32 v{vPL}, 0
    v_add_u32 v{vA0+1}, 0x10000, v{vL16}
    v_mov_b32 v9, v{vFO}
    v_mov_b32 v10, v{vFO+1}
    v_mov_b32 v13, v{vHO}
    s_cmp_eq_u32 s{sMODE}, 1
    s_cselect_b32 s{sT}, 0, 0x40000000
    s_cselect_b32 s{sCNT}, 0x40000000, 0
    v_add_u32 v14, s{sT}, v{vL16}
    v_add_u32 v15, s{sCNT}, v{vL16}
    v_add_u32 v{vA0+2}, 0x20000, v{vL16}
    s_waitcnt vmcnt(0)
    """)
    stamp(9)
    vFO2, vFV, vHO2 = 9, 11, 13
    def flag(v, soff):
        return f"buffer_store_dword v{v}, v{vFO2}, {ws()}, s{soff} offen\nbuffer_store_dword v{v}, v{vFO2+1}, {ws()}, s{soff} offen sc1"
    a(flag(58, sFL))
    a("s_barrier")
    stamp(10)
    poll("hn", vPL, vPA, sT2, 1, None)
    stamp(11)
    vm = VM()
    def hn_load(s):
        if s and s % 4 == 0: a(f"s_add_u32 s{sG}, s{sG}, 0x1000")
        a(f"buffer_load_dwordx4 {vr(vHN+4*s,4)}, v{vL16}, {ws()}, s{sG} offen offset:{(s%4)*1024} sc1"); vm.issue(("hn", s))
    HL = opt.get("hl", 14)
    for s in range(HL): hn_load(s)
    seq = [(t, s) for s in range(32) for t in (0, 1)] + [(t, s) for t in range(2, 7) for s in range(32)]
    LA = 7
    def a_read(n):
        t, s = seq[n]
        base = {0: vL16, 1: vA0+1, 2: vA0+2}[slot[t] >> 1]
        a(f"ds_read_b128 {vr(vAR+4*(n%8),4)}, v{base} offset:{(slot[t]&1)*32768 + s*1024}")
    sLG = sT3
    a(f"s_mov_b32 s{sLG}, {f32(LOG2E)}")
    def epilogue(t):
        A, pk = vAcc + 16*(t % 3), vPk + 4*(t & 1)
        ops = []
        for r in range(8): ops.append(f"v_exp_f32 v{vE+r}, -v{A+r}")
        for r in range(8): ops.append(f"v_fma_f32 v{vE+r}, v{vE+r}, s{sLG}, s{sLG}")
        for r in range(8): ops.append(f"v_rcp_f32 v{vE+r}, v{vE+r}")
        for r in range(8): ops.append(f"v_mul_f32 v{vE+r}, v{vE+r}, v{A+8+r}")
        for r in range(4): ops.append(f"v_cvt_pk_bf16_f32 v{pk+r}, v{vE+2*r}, v{vE+2*r+1}")
        return ops
    def act_store(t):
        if t == 4: a(f"s_add_u32 s{sAC}, s{sAC}, 0x1000")
        for va, fl in (((14, ""), (15, " sc1")) if t >= 7 - AL2 else ((vL16, " sc1"),)):
            a(f"buffer_store_dwordx4 {vr(vPk+4*(t&1),4)}, v{va}, {ws()}, s{sAC} offen offset:{(t%4)*1024}{fl}"); vm.issue(("st", t))
    def publish(n):
        a(f"s_waitcnt vmcnt({vm.cnt(('st', n-1))})\n" + flag(vFV + (n & 1), sAF)); vm.issue(); vm.issue()
    cost = lambda op: 8 if op.startswith(("v_exp", "v_rcp")) else 4
    for n in range(LA): a_read(n)
    pend = []
    PUB = {(4, 2): 2, (4, 30): 3, (5, 30): 4, (6, 30): 5} if AL2 < 7 else {(3, 27): 2, (4, 3): 3, (5, 3): 4, (6, 3): 5}
    for n, (t, s) in enumerate(seq):
        if t >= 2 and s == 4:
            for te in ([0, 1] if t == 2 else [t - 1]):
                pend += [("v", o) for o in epilogue(te)] + [("m", te)]
        w = f"lgkmcnt({min(LA - 1, len(seq) - 1 - n)})"
        if n < 64 and t == 0: w += f" vmcnt({vm.cnt(('hn', s))})"
        a("s_waitcnt " + w)
        if opt.get("pstamp") and ((s == 0 and t != 1) or (t, s) in ((0, 8), (0, 16))): stamp(1 + s//8 if t == 0 else t + 2, wait=False, inner=True)
        A = vAcc + 16*(t % 3)
        mf32(A, vAR + 4*(n % 8), vHN + 4*s, "0" if s == 0 else A)
        if n + LA < len(seq):
            if seq[n + LA] == (4, 0): a(f"s_waitcnt vmcnt({vm.cnt('h')})")
            if seq[n + LA] in ((4, 0), (5, 0)): a("s_barrier")
            a_read(n + LA)
        if t == 0 and s + HL < 32: hn_load(s + HL)
        if t == 1 and s in (20, 21):
            a(f"buffer_store_dwordx4 {vr(vH+4*(s-20),4)}, v{vHO2}, {ws()}, s26 offen offset:{512*(s-20)} sc1"); vm.issue("h")
        if (t, s) == (1, 31):
            a("s_barrier"); stamp(12, wait=False)
        if (t, s + 1) in PUB: a(f"v_mov_b32 v{vFV + (PUB[(t, s+1)] & 1)}, {PUB[(t, s+1)]}")
        if (t, s) in PUB: publish(PUB[(t, s)])
        elif pend and pend[0][0] == "m": act_store(pend.pop(0)[1])
        else:
            budget = 16
            while pend and pend[0][0] == "v" and budget >= cost(pend[0][1]):
                budget -= cost(pend[0][1]); a(pend.pop(0)[1])
        if s == 31: assert not pend or t < 2, (t, len(pend))
    stamp(13)
    a(f"v_mov_b32 v{vFV}, 6\ns_nop 10")
    for o in epilogue(6): a(o)
    act_store(6)
    publish(6)
    a(f"v_mov_b32 v{vFV+1}, 7")
    publish(7)
    if opt.get("wb"): a(f"s_cmp_lg_u32 s{sJ}, 0\ns_cbranch_scc1 kb_done\ns_waitcnt vmcnt(0)\nbuffer_wbl2 sc1")
    a("s_branch kb_done")
    a.label("kb_hn_far")
    hn_store(" sc1")
    a("s_branch kb_hn_back")
    slow_path("a")

    a.label("kb_grpb")
    a(f"s_setprio 3\ns_add_u32 s{sO2}, s{sO}, {WS_KV}")
    def kv_round(r):
        a(f"s_add_u32 m0, s{sO}, {r*4096}\ns_add_u32 s{sT}, s{sO2}, {r*4096}")
        a(f"buffer_load_dwordx4 v{vL16}, {ws()}, s{sT} offen lds")
    N1 = 12
    for r in range(N1): kv_round(r)
    vSA, vSD, vTR, vTD, vRO = 100, 101, 102, 103, 104
    sST, sD1, sD2, sS1, sS2 = 63, 26, 27, sT3, sMK
    srd(a, RA, 16, 512*3584); srd(a, RB, 18, 512*3584); srd(a, RD, 20, 1792*1024)
    a(f"""
    s_mul_i32 s{sST}, s{sJ}, 6144
    s_add_u32 s{sST}, s{sST}, {L_STG}
    v_lshrrev_b32 v{vT}, 3, v{vL}
    v_and_b32 v{vT2}, 7, v{vL}
    v_mul_u32_u24 v{vSA}, 3584, v{vT}
    v_lshl_add_u32 v{vSA}, v{vT2}, 4, v{vSA}
    v_lshlrev_b32 v{vSD}, 10, v{vT}
    v_lshl_add_u32 v{vSD}, v{vT2}, 4, v{vSD}
    s_lshl_b32 s{sCNT}, s2, 2
    s_add_u32 s{sCNT}, s{sCNT}, s{sJ}
    s_and_b32 s{sT2}, s{sCNT}, 31
    s_lshr_b32 s{sT}, s{sCNT}, 5
    s_lshl_b32 s{sD1}, s{sT}, 17
    s_lshl_b32 s{sS1}, s{sT}, 7
    s_lshl_b32 s{sT}, s{sT2}, 10
    s_add_u32 s{sD1}, s{sD1}, s{sT}
    s_add_u32 s{sD1}, s{sD1}, {WS_WGU}
    s_mul_i32 s{sT2}, s{sT2}, {16*3584}
    s_add_u32 s{sS1}, s{sS1}, s{sT2}
    s_and_b32 s{sT2}, s{sCNT}, 7
    s_lshr_b32 s{sT}, s{sCNT}, 3
    s_mul_i32 s{sD2}, s{sT2}, {2*FR}
    s_lshl_b32 s{sS2}, s{sT2}, 7
    s_lshl_b32 s{sT2}, s{sT}, 10
    s_add_u32 s{sD2}, s{sD2}, s{sT2}
    s_add_u32 s{sD2}, s{sD2}, {WS_WD}
    s_lshl_b32 s{sT}, s{sT}, 14
    s_add_u32 s{sS2}, s{sS2}, s{sT}
    v_bfe_u32 v{vT}, v{vL}, 2, 2
    v_lshrrev_b32 v{vT2}, 5, v{vL}
    v_lshl_add_u32 v{vT}, v{vT2}, 3, v{vT}
    v_lshl_add_u32 v{vTR}, v{vT}, 7, s{sST}
    v_bfe_u32 v{vT}, v{vL}, 1, 1
    v_lshl_add_u32 v{vTR}, v{vT}, 3, v{vTR}
    v_bfe_u32 v{vT}, v{vL}, 4, 1
    v_lshl_add_u32 v{vTD}, v{vT}, 4, v{vTR}
    v_lshl_add_u32 v{vTR}, v{vT}, 11, v{vTR}
    v_and_b32 v{vT}, 1, v{vL}
    v_lshl_add_u32 v{vTR}, v{vT}, 4, v{vTR}
    v_lshl_add_u32 v{vTD}, v{vT}, 5, v{vTD}
    """)
    attn_addrs(L_OXH)
    a(f"s_waitcnt vmcnt({N1 - R1})\ns_barrier")
    stamp(1)
    for r in range(N1, R3): kv_round(r)
    a(f"s_waitcnt vmcnt({R3 - R2})\ns_barrier")
    for i in range(6):
        r = (RA, RA, RB, RB, RD, RD)[i]
        base, step, va = (sS1, 8*3584, vSA) if i < 4 else (sS2, 8192, vSD)
        a(f"s_add_u32 m0, s{sST}, {i*1024}\ns_add_u32 s{sT}, s{base}, {step*(i&1)}\nbuffer_load_dwordx4 v{va}, s[{r}:{r+3}], s{sT} offen lds")
    for r in range(R3, 33): kv_round(r)
    a(f"s_waitcnt vmcnt({33 - R3})\ns_cmp_ge_u32 s2, 224\ns_cbranch_scc1 kb_rl_done")
    for b in range(6):
        for e in range(2):
            va, off = (vTR, e*512 + b*32) if b < 4 else (vTD, 4096 + e*512 + (b-4)*64)
            a(f"ds_read_b64_tr_b16 {vr(vRO+4*b+2*e,2)}, v{va} offset:{off}")
    for b in range(6):
        d = sD1 if b < 4 else sD2
        a(f"s_waitcnt lgkmcnt({10-2*b})")
        a(f"buffer_store_dwordx4 {vr(vRO+4*b,4)}, v{vL16}, {ws()}, s{d} offen sc1")
        if b not in (3, 5): a(f"s_add_u32 s{d}, s{d}, {0x8000 if b < 4 else FR}")
    a.label("kb_rl_done")
    a(f"""
    s_getreg_b32 s{sT2}, hwreg(HW_REG_XCC_ID, 0, 4)
    s_add_u32 s{sT2}, s{sT2}, 1
    s_lshl_b32 s{sT}, s{sGRP}, 5
    s_add_u32 s{sT}, s{sT}, s{sMEM}
    s_lshl_b32 s{sT}, s{sT}, 2
    s_add_u32 s{sT}, s{sT}, {WS_FLAG + FL_XID}
    v_mov_b32 v100, 1
    v_mov_b32 v101, 0
    v_mov_b32 v102, s{sT2}
    s_mov_b64 exec, 1
    s_cmp_lg_u32 s{sJ}, 0
    s_cbranch_scc1 kb_noxid
    buffer_store_dword v102, v101, {ws()}, s{sT} offen sc1
    """)
    a.label("kb_noxid")
    a("s_barrier"); stamp(2)
    a(f"""
    s_and_b32 s{sT}, s2, 31
    s_lshl_b32 s{sT}, s{sT}, 7
    s_add_u32 s{sT}, s{sT}, {WS_FLAG + FL_RL}
    s_waitcnt vmcnt(0)
    buffer_atomic_add v100, v101, {ws()}, s{sT} offen sc0 sc1
    v_mov_b32 v102, 1
    s_mov_b32 s{sT}, {WS_FLAG + FL_RL + 0x1000}
    s_waitcnt vmcnt(0)
    v_readfirstlane_b32 s{sT2}, v100
    s_cmp_lg_u32 s{sT2}, 31
    s_cbranch_scc1 kb_rl_sent
    buffer_atomic_add v102, v101, {ws()}, s{sT} offen sc0 sc1
    s_waitcnt vmcnt(0)
    v_readfirstlane_b32 s{sT2}, v102
    s_cmp_lg_u32 s{sT2}, 31
    s_cbranch_scc1 kb_rl_sent
    s_mov_b64 exec, 0xffff
    v_lshlrev_b32 v101, 7, v{vL}
    v_mov_b32 v102, 1
    buffer_store_dword v102, v101, {ws()}, s{sT} offen offset:2048 sc1
    """)
    a.label("kb_rl_sent")
    a(f"""
    s_mov_b64 exec, -1
    v_mov_b32 v115, 0
    v_mov_b32 v114, 0
    """)
    stamp(3)
    vW0, vW1, vWD, vAT, vAC4, vHh = 112, 113, 144, 80, 16, 8
    sWD, sAT = sO, sO2
    def wd_addrs():
        a(f"""
        s_and_b32 s{sT}, s{sJ}, 1
        s_mul_i32 s{sT2}, s{sT}, {FR}
        v_add_u32 v{vW0}, s{sT2}, v{vL16}
        s_sub_u32 s{sT2}, {FR}, s{sT2}
        v_add_u32 v{vW1}, s{sT2}, v{vL16}
        """)
    a(f"""
    s_and_b32 s{sT}, s{sMEM}, 7
    s_mul_i32 s{sWD}, s{sT}, {2*FR}
    s_mul_i32 s{sT}, s{sJ}, {28*1024}
    s_add_u32 s{sWD}, s{sWD}, s{sT}
    s_add_u32 s{sWD}, s{sWD}, {WS_WD}
    """)
    wd_addrs()
    vm = VM()
    def koff(u): return (7*(u & 3) + (u >> 2))*1024
    def wd_load(u):
        a(f"s_add_u32 s{sT}, s{sWD}, {koff(u)}")
        for n in range(2):
            a(f"buffer_load_dwordx4 {vr(vWD+8*(u%14)+4*n,4)}, v{(vW0, vW1)[n]}, {ws()}, s{sT} offen sc1")
            vm.issue(("w", u))
    def ready():
        a(f"s_lshl_b32 s{sT2}, s{sGRP}, 7\ns_add_u32 s{sT2}, s{sT2}, {WS_FLAG + FL_RL + 0x1800}")
        poll("rl", 114, 115, sT2, 1, None, sleep=4)
        stamp(4)
        for u in range(14): wd_load(u)
    def mid():
        a("s_barrier"); stamp(5)
    TX = -(-3*32768 // KVT) + 1
    a("s_setprio 1")
    attention("b", {opt.get("n0a", 1): lambda: (bar(), ready()), opt.get("n0", 2): mid, TX: bar}, {})
    stamp(6)
    gu_base()
    a("s_barrier")
    gu_dma(1)
    a("s_barrier")
    stamp(7)
    gu_dma(2); gu_dma(3)
    a("s_waitcnt vmcnt(8)\ns_barrier")
    stamp(8)
    a("s_waitcnt vmcnt(0)\ns_barrier")
    gu_dma(4)
    a(f"""
    v_bfe_u32 v4, v{vL}, 3, 2
    v_add_u32 v4, 3, v4
    v_lshlrev_b32 v4, 10, v4
    v_and_b32 v5, 7, v{vL}
    v_lshl_add_u32 v4, v5, 7, v4
    v_lshrrev_b32 v5, 5, v{vL}
    v_mul_u32_u24 v5, {FR}, v5
    v_add_u32 v4, v4, v5
    s_and_b32 s{sT}, s{sGRP}, 1
    s_lshl_b32 s{sT}, s{sT}, 1
    s_lshr_b32 s{sT2}, s{sMEM}, 3
    s_add_u32 s{sT}, s{sT}, s{sT2}
    s_mul_i32 s{sT}, s{sT}, {7*1024}
    s_add_u32 s{sT}, s{sT}, s{sWD}
    buffer_load_dword v5, v4, {ws()}, s{sT if not opt.get("nowdt") else sMK} offen sc1
    """)
    gu_dma(5); gu_dma(6)
    a("s_waitcnt vmcnt(17)")
    if opt.get("pstamp"): stamp(1, inner=True)
    a("s_barrier\ns_waitcnt vmcnt(16)")
    vW0, vW1, vA0_, vA1_, vPL4, vPA4 = 4, 5, 6, 7, 0, 3
    wd_addrs()
    sFA, sHH = sT3, 63
    a(f"""
    s_lshr_b32 s{sT}, s{sJ}, 1
    s_mul_i32 s{sT2}, s{sT}, {FR}
    v_add_u32 v{vA0_}, s{sT2}, v{vL16}
    s_sub_u32 s{sT2}, {FR}, s{sT2}
    v_add_u32 v{vA1_}, s{sT2}, v{vL16}
    s_lshr_b32 s{sT2}, s{sMEM}, 3
    s_lshl_b32 s{sCNT}, s{sGRP}, 1
    s_add_u32 s{sCNT}, s{sCNT}, s{sT2}
    s_lshl_b32 s{sCNT}, s{sCNT}, 1
    s_lshl_b32 s{sFA}, s{sCNT}, 8
    s_add_u32 s{sFA}, s{sFA}, {WS_FLAG + FL_ACT}
    s_mul_i32 s{sAT}, s{sCNT}, {FR}
    s_mul_i32 s{sT2}, s{sJ}, {28*1024}
    s_add_u32 s{sAT}, s{sAT}, s{sT2}
    s_add_u32 s{sAT}, s{sAT}, {WS_ACT}
    s_add_u32 s{sCNT}, s{sCNT}, s{sT}
    s_lshl_b32 s{sHH}, s{sCNT}, 15
    s_and_b32 s{sT}, s{sMEM}, 7
    s_lshl_b32 s{sT}, s{sT}, 1
    s_and_b32 s{sT2}, s{sJ}, 1
    s_add_u32 s{sT}, s{sT}, s{sT2}
    s_lshl_b32 s26, s{sT}, 6
    s_add_u32 s26, s26, s{sHH}
    s_lshl_b32 s{sT}, s{sT}, 11
    s_add_u32 s{sHH}, s{sHH}, s{sT}
    s_add_u32 s{sHH}, s{sHH}, {WS_H}
    s_lshl_b32 s{sT}, s{sJ}, 2
    s_lshl_b32 s{sMK}, 0xf000f, s{sT}
    v_and_b32 v{vPA4}, 15, v{vL}
    v_lshlrev_b32 v{vPA4}, 2, v{vPA4}
    v_bfe_u32 v16, v{vL}, 4, 1
    v_lshl_add_u32 v{vPA4}, v16, 8, v{vPA4}
    v_and_b32 v16, 31, v{vL}
    v_lshlrev_b32 v16, 4, v16
    v_lshrrev_b32 v17, 5, v{vL}
    v_lshl_add_u32 v16, v17, 10, v16
    v_mov_b32 v{vPL4}, 0
    s_waitcnt vmcnt(0)
    """)
    if opt.get("pstamp"): stamp(2, inner=True)
    a("s_barrier")
    stamp(9)
    poll("act0", vPL4, vPA4, sFA, 2, None)
    stamp(10)
    vm, lg = VM(), VM()
    blk = {("w", u): vWD + 8*u for u in range(14)}
    free = [vAT + 8*i for i in range(8)]
    for u in range(14): vm.pos[("w", u)] = 0
    for h in range(2):
        a(f"buffer_load_dwordx4 {vr(vHh+4*h,4)}, v16, {ws()}, s{sHH} offen offset:{512*h} sc1")
        vm.issue("h")
    def g_load(kind, u):
        r = blk[(kind, u)] = free.pop(0)
        a(f"s_add_u32 s{sT}, s{sAT if kind == 'a' else sWD}, {koff(u)}")
        for n in range(2):
            va = (vA0_, vA1_)[n] if kind == "a" else (vW0, vW1)[n]
            a(f"buffer_load_dwordx4 {vr(r+4*n,4)}, v{va}, {ws()}, s{sT} offen sc1")
            vm.issue((kind, u))
    THR = opt.get("thr", 10)
    for u in range(8):
        g_load("a", u)
        if vm.n > THR: a(f"s_waitcnt vmcnt({THR})")
    for i in range(8):
        a(f"v_lshlrev_b32 v{vAC4+2*i}, 16, v{vHh+i}\nv_and_b32 v{vAC4+2*i+1}, 0xffff0000, v{vHh+i}")
    assert vm.cnt("h") >= THR
    LW0, LW1 = 14, 22
    vLWD, vPN = 8, 9
    a(f"s_lshl_b32 s{sT2}, s{sJ}, 14\ns_add_u32 s{sT2}, s{sT2}, 0x8000\nv_add_u32 v{vLWD}, s{sT2}, v{vL16}")
    def poll_issue():
        a(f"buffer_load_dword v{vPN}, v{vPA4}, {ws()}, s{sFA} offen sc1"); vm.issue("p")
    for u in range(LW0, LW1):
        for n in range(2):
            a(f"s_add_u32 m0, s{sT2}, {(u-LW0)*2048 + n*1024}")
            a(f"s_add_u32 s{sT}, s{sWD}, {koff(u)}" if n == 0 else "s_nop 0")
            a(f"buffer_load_dwordx4 v{(vW0, vW1)[n]}, {ws()}, s{sT} offen sc1 lds"); vm.issue(("l", u))
        a(f"s_waitcnt vmcnt({THR})")
        if u == LW1 - 3: poll_issue()
    a(f"s_setprio {opt.get('p4prio', 0)}")
    GATE = {0: 3, 3: 4, 6: 5, 10: 6, 13: 7}
    PI, PR = {0: 3, 3: 6, 6: 10}, {-1: 0}
    if opt.get("sched") == 1: GATE, PI = {0: 3, 3: 4, 6: 5, 9: 6, 12: 7}, {1: 6, 6: 9, 9: 12}
    PR = {0} | set(PI.values())
    queue = sorted([("a", u) for u in range(8, 28)] + [("w", u) for u in range(LW1, 28)], key=lambda k: (k[1], k[0]))
    avail = 2
    LAH = opt.get("lah", 11)
    for u in range(28):
        w = f"vmcnt({min(63, vm.cnt(('a', u)), *([] if LW0 <= u < LW1 else [vm.cnt(('w', u))]))})"
        if LW0 <= u < LW1: w += f" lgkmcnt({lg.cnt(u)})"
        a("s_waitcnt " + w)
        if opt.get("pstamp") and u % 4 == 0 and u < 24: stamp(3 + u//4, wait=False, inner=True)
        for k in (1, 2, 3, 0):
            A = vAC4 + 16*k
            mf32(A, blk[("w", u)] + 4*(k & 1), blk[("a", u)] + 4*(k >> 1), "0" if (u == 0 and k) else A)
        free += [blk[("w", u)], blk[("a", u)]]
        if LW0 <= u + 2 < LW1:
            r = blk[("w", u+2)] = free.pop(0)
            if u + 2 == LW0: a(f"s_waitcnt vmcnt({min(63, vm.cnt(('l', LW1-1)))})")
            for n in range(2):
                a(f"ds_read_b128 {vr(r+4*n,4)}, v{vLWD} offset:{(u+2-LW0)*2048 + n*1024}"); lg.issue(u + 2)
        if u in PR: a(f"s_waitcnt vmcnt({vm.cnt('p')})\nv_max_u32 v{vPL4}, v{vPL4}, v{vPN}")
        if u in GATE:
            avail = GATE[u]
            poll(f"act{avail}", vPL4, vPA4, sFA, avail, sMK)
            if avail == 7: stamp(11)
        if u in PI: poll_issue()
        if u == 20: a("s_barrier")
        for key in list(queue):
            if not free or key[1] > u + LAH: break
            if key[0] == "a" and key[1] >= 4*avail: continue
            g_load(*key); queue.remove(key)
    assert not queue
    stamp(12)
    for k in range(1, 4):
        a(f"s_xor_b32 s{sT}, s{sJ}, {k}\ns_mul_i32 s{sT}, s{sT}, {3*4096}\ns_add_u32 s{sT}, s{sT}, {L_RED + (k-1)*4096}")
        a(f"v_add_u32 v{4+k}, s{sT}, v{vL16}")
    a(f"s_mul_i32 s{sT}, s{sJ}, {3*4096}\ns_add_u32 s{sT}, s{sT}, {L_RED}\nv_add_u32 v4, s{sT}, v{vL16}")
    for k in range(1, 4):
        for q in range(4):
            a(f"ds_write_b128 v{4+k}, {vr(vAC4+16*k+4*q,4)} offset:{q*1024}")
    srd(a, OUT, 22, 2048*1024)
    a(f"""
    v_and_b32 v8, 31, v{vL}
    v_lshlrev_b32 v8, 10, v8
    v_lshrrev_b32 v9, 5, v{vL}
    v_lshl_add_u32 v8, v9, 5, v8
    s_waitcnt lgkmcnt(0)
    s_barrier
    """)
    stamp(13)
    for q in range(4):
        for k in range(3):
            a(f"ds_read_b128 {vr(32+16*k+4*q,4)}, v4 offset:{k*4096 + q*1024}")
    for q in range(4):
        a(f"s_waitcnt lgkmcnt({9-3*q})")
        for r in range(4*q, 4*q + 4):
            a(f"v_add_f32 v{vAC4+r}, v{vAC4+r}, v{32+r}\nv_add_f32 v{48+r}, v{48+r}, v{64+r}")
        for r in range(4*q, 4*q + 4): a(f"v_add_f32 v{vAC4+r}, v{vAC4+r}, v{48+r}")
        for r in range(2*q, 2*q + 2): a(f"v_cvt_pk_bf16_f32 v{80+r}, v{vAC4+2*r}, v{vAC4+2*r+1}")
        if q & 1:
            a(f"buffer_store_dwordx4 {vr(80+4*(q>>1),4)}, v8, s[{OUT}:{OUT+3}], s26 offen offset:{16*(q>>1)}" + (" sc1" if opt.get("outsc1") else ""))
    a("s_branch kb_done")
    slow_path("b")

    a.label("kb_done")
    if opt.get("stamp"):
        a("s_waitcnt vmcnt(0)")
        stamp(14)
        a(f"""
        s_lshl_b32 s{sT}, s2, 3
        s_add_u32 s{sT}, s{sT}, s{sW}
        s_lshl_b32 s{sT}, s{sT}, 6
        s_add_u32 s{sT}, s{sT}, {WS_DBG + 0x10000}
        v_mov_b32 v1, 0
        """)
        for i in range(16): a(f"v_mov_b32 v{4+i}, s{64+2*min(i,14)}")
        for i in range(4): a(f"buffer_store_dwordx4 {vr(4+4*i,4)}, v1, {ws()}, s{sT} offen offset:{16*i}")
    if opt.get("dstamp"):
        w = opt["dstamp"] - 1
        a(f"""
        s_cmp_lg_u32 s2, 100
        s_cbranch_scc1 kb_exit
        s_cmp_lg_u32 s{sW}, {w}
        s_cbranch_scc1 kb_exit
        s_load_dwordx2 s[4:5], s[0:1], 80
        s_waitcnt lgkmcnt(0) vmcnt(0)
        s_mov_b32 s6, 256
        s_mov_b32 s7, 0x00020000
        s_mov_b32 s8, {WS_DBG + 100*8*32}
        buffer_load_dwordx4 v[24:27], v1, {ws()}, s8 offen
        buffer_load_dwordx4 v[28:31], v1, {ws()}, s8 offen offset:16
        s_waitcnt vmcnt(0)
        """)
        for i in list(range(4, 20)) + [25, 26, 31]: a(f"v_sub_u32 v{i}, v{i}, v24")
        a("""
        buffer_store_dword v25, v1, s[4:7], 0 offen
        buffer_store_dword v26, v1, s[4:7], 0 offen offset:4
        buffer_store_dword v31, v1, s[4:7], 0 offen offset:8
        """)
        if opt.get("spin") is not None:
            a(f"""
            v_readfirstlane_b32 s10, v24
            v_readfirstlane_b32 s11, v{opt["spin"] if opt["spin"] else 1}
            s_mov_b32 s9, 20000
            s_add_u32 s11, s11, 6000
            """)
            a.label("kb_spin")
            a("""
            s_memrealtime s[12:13]
            s_waitcnt lgkmcnt(0)
            s_sub_u32 s12, s12, s10
            s_sub_u32 s9, s9, 1
            s_cbranch_scc1 kb_spun
            s_cmp_lt_u32 s12, s11
            s_cbranch_scc1 kb_spin
            """)
            a.label("kb_spun")
        for i in range(13): a(f"buffer_store_dword v{4+(i if i < 12 else 14)+(1 if 0 < i < 12 else 0)}, v1, s[4:7], 0 offen offset:{12+4*i}")
    a.label("kb_exit")
    a("s_endpgm")
```

```python
from asmlib import *
from layout import *

LDS_X, LDS_W, LDS_KV, LDS_SC = 0, 65536, 131072, 147456
SC_MEAN, SC_RSTD, SC_CS = LDS_SC, LDS_SC + 256, LDS_SC + 512
LDS_RO = LDS_SC + 1024
KA_LDS = LDS_RO + 4096

def srd(a, d, base, size):
    a(f"s_mov_b32 s{d}, s{base}\ns_mov_b32 s{d+1}, s{base+1}\ns_mov_b32 s{d+2}, {size:#x}\ns_mov_b32 s{d+3}, 0x00020000")

def code_touch(a, tag, start, end, vidx, v0, s0):
    a(f"s_getpc_b64 s[{s0}:{s0+1}]")
    a.label(f"ct_{tag}")
    if start is None: start = f"ct_{tag}"
    else: a(f"s_add_u32 s{s0}, s{s0}, {start}-ct_{tag}\ns_addc_u32 s{s0+1}, s{s0+1}, 0")
    a(f"""
    v_lshlrev_b32 v{v0}, 7, v{vidx}
    v_mov_b32 v{v0+1}, s{s0+1}
    v_cmp_gt_u32 vcc, {end}-{start}, v{v0}
    s_and_saveexec_b64 s[{s0+2}:{s0+3}], vcc
    s_cbranch_execz ct_skip_{tag}
    v_add_co_u32 v{v0}, vcc, s{s0}, v{v0}
    s_nop 1
    v_addc_co_u32 v{v0+1}, vcc, 0, v{v0+1}, vcc
    global_load_dword v{v0+2}, v[{v0}:{v0+1}], off
    """)
    a.label(f"ct_skip_{tag}")
    a(f"s_mov_b64 exec, -1")

def gen_ka(a, name, opt):
    X, WQ, WKV, WS = 16, 20, 24, 28
    sRB, sCB, sROT, sW, sT, sT2, sM = 32, 33, 34, 35, 36, 37, 38
    vL, vXA, vXB, vWA, vKA, vT, vT2 = 1, 2, 3, 4, 5, 6, 7
    a.label(name)
    a(f"""
    s_cmp_ge_u32 s2, 256
    s_cbranch_scc1 ka_exit
    s_load_dwordx8 s[4:11], s[0:1], 0
    s_load_dwordx2 s[12:13], s[0:1], 88
    s_load_dwordx2 s[14:15], s[0:1], 32
    s_load_dwordx4 s[76:79], s[0:1], 48
    s_load_dwordx2 s[80:81], s[0:1], 64
    """)
    def stamp(i):
        if opt.get("stamp"): a(f"s_memrealtime s[{60+2*i}:{61+2*i}]")
    stamp(0)
    if not opt.get("nopf"): code_touch(a, "a", None, "ka_exit", 0, 24, 48)
    a(f"""
    v_lshrrev_b32 v{vT}, 6, v0
    v_and_b32 v{vL}, 63, v0
    s_lshr_b32 s{sT}, s2, 3
    v_readfirstlane_b32 s{sW}, v{vT}
    s_and_b32 s{sCB}, s{sT}, 7
    s_lshr_b32 s{sT}, s{sT}, 3
    s_add_u32 s{sROT}, s{sT}, s{sCB}
    s_and_b32 s{sROT}, s{sROT}, 3
    s_and_b32 s{sRB}, s2, 7
    s_lshl_b32 s{sRB}, s{sRB}, 2
    s_add_u32 s{sRB}, s{sRB}, s{sT}
    """)
    a(f"""
    v_lshrrev_b32 v{vT2}, 4, v{vL}
    v_lshl_add_u32 v{vT}, v{vT}, 3, v{vT2}
    v_xor_b32 v{vXA}, v{vL}, v{vT}
    v_and_b32 v{vXA}, 15, v{vXA}
    v_lshlrev_b32 v{vXA}, 4, v{vXA}
    v_lshl_add_u32 v{vXA}, v{vT}, 10, v{vXA}
    v_xor_b32 v{vXB}, 64, v{vXA}
    v_add_u32 v{vXB}, 0x1000, v{vXB}
    v_and_b32 v{vT2}, 1, v{vT2}
    v_lshlrev_b32 v{vT2}, 2, v{vT2}
    v_xor_b32 v{vT2}, v{vT2}, v{vL}
    v_and_b32 v{vT2}, 7, v{vT2}
    v_lshlrev_b32 v{vT2}, 4, v{vT2}
    v_lshrrev_b32 v{vWA}, 3, v{vL}
    v_lshl_add_u32 v{vWA}, v{vWA}, 10, v{vT2}
    v_lshlrev_b32 v{vKA}, 4, v{vL}
    s_waitcnt lgkmcnt(0)
    """)
    srd(a, X, 4, 2048*1024)
    srd(a, WQ, 6, 512*1024)
    a(f"""
    s_bitcmp1_b32 s{sCB}, 0
    s_cselect_b32 s{WKV}, s10, s8
    s_cselect_b32 s{WKV+1}, s11, s9
    s_mov_b32 s{WKV+2}, 0x4000
    s_mov_b32 s{WKV+3}, 0x00020000
    """)
    sXO, sWO, sKC, sMW = 40, 41, 42, 43
    a(f"""
    s_lshl_b32 s{sMW}, s{sW}, 11
    s_lshl_b32 s{sXO}, s{sRB}, 16
    s_lshl_b32 s{sWO}, s{sW}, 14
    s_lshl_b32 s{sT}, s{sCB}, 7
    s_add_u32 s{sWO}, s{sWO}, s{sT}
    """)
    def issue(i):
        a(f"""
        s_add_u32 s{sKC}, s{sROT}, {i}
        s_and_b32 s{sKC}, s{sKC}, 3
        s_lshl_b32 s46, s{sKC}, 8
        s_add_u32 s46, s46, s{sXO}
        s_add_u32 m0, s{sMW}, {LDS_X + i*16384}
        s_lshl_b32 s47, s{sKC}, 17
        buffer_load_dwordx4 v{vXA}, s[{X}:{X+3}], s46 offen lds
        s_add_u32 m0, s{sMW}, {LDS_X + i*16384 + 1024}
        s_add_u32 s47, s47, s{sWO}
        buffer_load_dwordx4 v{vXB}, s[{X}:{X+3}], s46 offen lds
        s_add_u32 m0, s{sMW}, {LDS_W + i*16384}
        s_add_u32 s46, s47, 0x2000
        buffer_load_dwordx4 v{vWA}, s[{WQ}:{WQ+3}], s47 offen lds
        s_add_u32 m0, s{sMW}, {LDS_W + i*16384 + 1024}
        s_nop 0
        buffer_load_dwordx4 v{vWA}, s[{WQ}:{WQ+3}], s46 offen lds
        """)
    issue(0)
    a(f"""
    s_lshl_b32 s{sT}, s{sROT}, 12
    s_add_u32 s{sT}, s{sT}, s{sMW}
    s_add_u32 m0, s{sMW}, {LDS_KV}
    s_and_b32 s{sT}, s{sT}, 0x3fff
    buffer_load_dwordx4 v{vKA}, s[{WKV}:{WKV+3}], s{sT} offen lds
    buffer_load_dwordx4 v{vKA}, s[{WKV}:{WKV+3}], s{sT} offen offset:1024 lds
    """)
    srd(a, WS, 12, WS_SIZE)
    stamp(1)
    if opt.get("stamp"): a("s_waitcnt lgkmcnt(0)")
    def chunk_wait(i):
        if opt.get("pre"): stamp(2 + i)
        if i == 0:
            a("s_barrier")
            issue(1)
        a(f"s_waitcnt vmcnt({4 if i < 3 else 0})\ns_barrier")
        if not opt.get("pre"): stamp(2 + i)
        if opt.get("stamp"): a("s_waitcnt lgkmcnt(0)")
    def chunk_next(i):
        if i < 2: issue(i + 2)
    vTok, vKH = 8, 9
    a(f"""
    v_and_b32 v{vTok}, 31, v{vL}
    v_lshrrev_b32 v{vKH}, 5, v{vL}
    s_cmp_ge_u32 s{sW}, 4
    s_cbranch_scc1 ka_help
    """)
    vXF = 10
    a(f"""
    s_and_b32 s{sT}, s{sW}, 1
    s_lshl_b32 s{sT}, s{sT}, 13
    v_xor_b32 v{vT}, v{vKH}, v{vTok}
    v_and_b32 v{vT}, 15, v{vT}
    v_lshlrev_b32 v{vT}, 4, v{vT}
    v_lshl_add_u32 v{vT}, v{vTok}, 8, v{vT}
    v_add_u32 v{vXF}, s{sT}, v{vT}
    """)
    for s in range(1, 8):
        a(f"v_xor_b32 v{vXF+s}, {s << 5}, v{vXF}")

    def w_frag_addr(dst, ft_sgpr):
        a(f"""
        v_bfe_u32 v{vT}, v{vL}, 2, 2
        v_lshl_add_u32 v{vT}, v{vKH}, 3, v{vT}
        v_lshlrev_b32 v{dst}, 7, v{vT}
        v_bfe_u32 v{vT}, v{vL}, 3, 1
        v_lshlrev_b32 v{vT}, 6, v{vT}
        """)
        if ft_sgpr is not None:
            a(f"v_xor_b32 v{vT}, s{ft_sgpr}, v{vT}")
        a(f"""
        v_add_u32 v{dst}, v{dst}, v{vT}
        v_bfe_u32 v{vT}, v{vL}, 4, 1
        v_lshl_add_u32 v{dst}, v{vT}, 5, v{dst}
        v_and_b32 v{vT}, 1, v{vL}
        v_lshl_add_u32 v{dst}, v{vT}, 4, v{dst}
        v_bfe_u32 v{vT}, v{vL}, 1, 1
        v_lshl_add_u32 v{dst}, v{vT}, 3, v{dst}
        v_add_u32 v{dst}, {LDS_W}, v{dst}
        """)

    vWF, vAcc, vFr = 18, 32, 64
    a(f"s_lshr_b32 s{sT2}, s{sW}, 1\ns_lshl_b32 s{sT2}, s{sT2}, 6")
    w_frag_addr(vWF, sT2)
    vQO, vCSA, vSTA = 19, 20, 21
    a(f"""
    s_and_b32 s{sT}, s{sW}, 1
    s_lshl_b32 s{sT}, s{sT}, 5
    v_add_u32 v{vT}, s{sT}, v{vTok}
    v_lshlrev_b32 v{vSTA}, 2, v{vT}
    v_add_u32 v{vSTA}, {SC_MEAN}, v{vSTA}
    v_lshrrev_b32 v{vT2}, 3, v{vT}
    v_lshlrev_b32 v{vQO}, 13, v{vT2}
    v_and_b32 v{vT}, 7, v{vT}
    v_lshl_add_u32 v{vQO}, v{vT}, 4, v{vQO}
    v_lshl_add_u32 v{vQO}, v{vKH}, 9, v{vQO}
    s_lshl_b32 s{sT}, s{sT2}, 1
    s_add_u32 s{sT}, s{sT}, {SC_CS}
    v_lshl_add_u32 v{vCSA}, v{vKH}, 4, s{sT}
    s_lshl_b32 s{sT2}, s{sT2}, 2
    s_lshl_b32 s{sT}, s{sCB}, 10
    s_add_u32 s{sT2}, s{sT2}, s{sT}
    s_add_u32 s{sM}, s{sT2}, s{sXO}
    """)
    TS, sTO = 52, 56
    a(f"""
    s_cmp_eq_u32 s{sW}, 1
    s_cselect_b32 s{TS}, s78, s76
    s_cselect_b32 s{TS+1}, s79, s77
    s_cmp_ge_u32 s{sW}, 2
    s_cselect_b32 s{TS}, s80, s{TS}
    s_cselect_b32 s{TS+1}, s81, s{TS+1}
    s_mov_b32 s{TS+2}, {512*3584}
    s_mov_b32 s{TS+3}, 0x00020000
    s_cbranch_scc1 ka_td
    v_mul_u32_u24 v27, 3584, v{vL}
    s_and_b32 s{sTO}, s2, 7
    s_mul_i32 s{sTO}, s{sTO}, {64*3584}
    s_lshr_b32 s57, s2, 3
    s_lshl_b32 s57, s57, 7
    s_add_u32 s{sTO}, s{sTO}, s57
    s_branch ka_te
    """)
    a.label("ka_td")
    a(f"""
    v_lshrrev_b32 v27, 2, v{vL}
    v_lshlrev_b32 v27, 10, v27
    v_and_b32 v{vT}, 3, v{vL}
    v_lshl_add_u32 v27, v{vT}, 7, v27
    s_lshr_b32 s{sTO}, s2, 1
    s_lshl_b32 s{sTO}, s{sTO}, 14
    s_and_b32 s57, s2, 1
    s_lshl_b32 s57, s57, 9
    s_add_u32 s{sTO}, s{sTO}, s57
    """)
    a.label("ka_te")
    a(f"""
    s_cmp_eq_u32 s{sW}, 3
    s_cselect_b32 s{sTO}, 0x40000000, s{sTO}
    s_cmp_ge_u32 s2, 224
    s_cselect_b32 s{sTO}, 0x40000000, s{sTO}
    """)
    def q_reads(i, s):
        f = vFr + 8*s
        a(f"ds_read_b128 {vr(f,4)}, v{vXF+s} offset:{i*16384}")
        a(f"ds_read_b64_tr_b16 {vr(f+4,2)}, v{vWF} offset:{(8*i+s)*2048}")
        a(f"ds_read_b64_tr_b16 {vr(f+6,2)}, v{vWF} offset:{(8*i+s)*2048+512}")
    for i in range(4):
        chunk_wait(i)
        for s in range(4): q_reads(i, s)
        chunk_next(i)
        if i == 3 and opt.get("touch"):
            a.comment("waves 0-2 pull the sources of this workgroup's later re-layout units into L2")
            a(f"buffer_load_dword v26, v27, s[{TS}:{TS+3}], s{sTO} offen")
        for s in range(8):
            a(f"s_waitcnt lgkmcnt({3*(min(s+3,7)-s)})")
            f = vFr + 8*s
            c = "0" if (i == 0 and s == 0) else vr(vAcc, 16)
            a(f"v_mfma_f32_32x32x16_bf16 {vr(vAcc,16)}, {vr(f+4,4)}, {vr(f,4)}, {c}")
            if s + 4 < 8: q_reads(i, s + 4)
    vCS, vMean, vRs = 48, 22, 23
    a("s_barrier")
    a(f"ds_read_b32 v{vMean}, v{vSTA}\nds_read_b32 v{vRs}, v{vSTA} offset:256")
    for q in range(4):
        a(f"ds_read_b128 {vr(vCS+4*q,4)}, v{vCSA} offset:{32*q}")
    a(f"""
    s_waitcnt lgkmcnt(4)
    v_mul_f32 v{vRs}, {f32(0.25*LOG2E)}, v{vRs}
    v_mul_f32 v{vMean}, v{vMean}, v{vRs}
    s_waitcnt lgkmcnt(0)
    """)
    for r in range(16): a(f"v_mul_f32 v{vCS+r}, v{vCS+r}, v{vMean}")
    for r in range(16): a(f"v_fma_f32 v{vAcc+r}, v{vAcc+r}, v{vRs}, -v{vCS+r}")
    for r in range(8): a(f"v_cvt_pk_bf16_f32 v{vFr+r}, v{vAcc+2*r}, v{vAcc+2*r+1}")
    a(f"""
    buffer_store_dwordx4 {vr(vFr,4)}, v{vQO}, s[{WS}:{WS+3}], s{sM} offen sc1
    buffer_store_dwordx4 {vr(vFr+4,4)}, v{vQO}, s[{WS}:{WS+3}], s{sM} offen offset:128 sc1
    s_branch ka_done
    """)

    a.label("ka_help")
    vT16, vG, vWK, vW16, vOn4 = 8, 9, 14, 17, 20
    vD, vD2, vSum, vGr, vCs = 32, 36, 40, 44, 48
    sTQ, sJ = 44, 45
    a(f"""
    s_lshr_b32 s{sTQ}, s{sCB}, 1
    s_and_b32 s{sJ}, s{sW}, 3
    v_and_b32 v{vT16}, 15, v{vL}
    v_lshrrev_b32 v{vG}, 4, v{vL}
    s_lshl_b32 s{sT}, s{sJ}, 12
    v_xor_b32 v{vT}, v{vG}, v{vT16}
    v_lshlrev_b32 v{vT}, 4, v{vT}
    v_lshl_add_u32 v{vT}, v{vT16}, 8, v{vT}
    v_add_u32 v10, s{sT}, v{vT}
    v_xor_b32 v11, 64, v10
    v_xor_b32 v12, 0x80, v10
    v_xor_b32 v13, 0xc0, v10
    v_bfe_u32 v{vT}, v{vL}, 2, 2
    v_lshl_add_u32 v{vT}, v{vG}, 3, v{vT}
    v_lshlrev_b32 v{vWK}, 5, v{vT}
    v_lshlrev_b32 v{vW16}, 7, v{vT}
    v_and_b32 v{vT}, 3, v{vL}
    v_lshl_add_u32 v{vWK}, v{vT}, 3, v{vWK}
    v_add_u32 v{vWK}, {LDS_KV}, v{vWK}
    s_lshl_b32 s{sT}, s{sJ}, 5
    v_bfe_u32 v{vT}, v{vL}, 3, 1
    v_lshlrev_b32 v{vT}, 6, v{vT}
    v_xor_b32 v{vT}, s{sT}, v{vT}
    v_add_u32 v{vW16}, v{vW16}, v{vT}
    v_and_b32 v{vT}, 1, v{vL}
    v_lshl_add_u32 v{vW16}, v{vT}, 4, v{vW16}
    v_bfe_u32 v{vT}, v{vL}, 1, 1
    v_lshl_add_u32 v{vW16}, v{vT}, 3, v{vW16}
    v_add_u32 v{vW16}, {LDS_W}, v{vW16}
    s_lshl_b32 s{sT}, s{sRB}, 1
    s_lshr_b32 s{sT2}, s{sTQ}, 1
    s_add_u32 s{sT}, s{sT}, s{sT2}
    s_mul_i32 s{sM}, s{sT}, {KVT}
    s_add_u32 s{sM}, s{sM}, {WS_KV}
    s_lshl_b32 s{sT}, s{sJ}, 6
    s_add_u32 s{sT}, s{sT}, {SC_MEAN}
    v_lshl_add_u32 v18, v{vT16}, 2, s{sT}
    s_and_b32 s{sT2}, s{sTQ}, 1
    """)
    for r in range(4): a(f"v_mov_b32 v{vOn4+r}, {ONES:#x}")
    if not opt.get("nopf") and not opt.get("only_a"):
        a(f"s_cmp_lg_u32 s{sJ}, 0\ns_cbranch_scc1 ka_nopf\ns_lshl_b32 s48, s{sCB}, 6\nv_add_u32 v27, s48, v{vL}")
        code_touch(a, "b", "kb_entry" if opt.get("merge") else NAME + "_kernel", "kb_exit", 27, 24, 48)
        a.label("ka_nopf")
    RO, sRL, vRA, vRT = 52, 56, 28, 29
    srd(a, RO, 14, 512*1024)
    a(f"""
    s_xor_b32 s48, s{sTQ}, 2
    s_cmp_eq_u32 s{sJ}, s48
    s_cselect_b32 s{sRL}, s2, 0x1000
    s_cmp_ge_u32 s{sRL}, 128
    s_cbranch_scc1 ka_norl
    v_lshrrev_b32 v{vT}, 3, v{vL}
    v_lshlrev_b32 v{vRA}, 10, v{vT}
    v_bfe_u32 v{vT}, v{vL}, 1, 2
    v_lshl_add_u32 v{vRA}, v{vT}, 6, v{vRA}
    v_and_b32 v{vT}, 1, v{vL}
    v_lshl_add_u32 v{vRA}, v{vT}, 4, v{vRA}
    s_bfe_u32 s48, s{sRL}, 0x40001
    s_lshl_b32 s48, s48, 15
    s_lshr_b32 s49, s{sRL}, 5
    s_lshl_b32 s49, s49, 8
    s_add_u32 s48, s48, s49
    s_and_b32 s49, s{sRL}, 1
    s_lshl_b32 s49, s49, 5
    s_add_u32 s48, s48, s49
    """)
    for i in range(4):
        a(f"s_mov_b32 m0, {LDS_RO + i*1024}\ns_add_u32 s49, s48, {i*8192}\nbuffer_load_dwordx4 v{vRA}, s[{RO}:{RO+3}], s49 offen lds")
    a.label("ka_norl")
    a(f"""
    s_cmp_lg_u32 s{sJ}, s{sTQ}
    s_cbranch_scc1 ka_h0
    s_bitcmp1_b32 s{sCB}, 0
    s_cbranch_scc1 ka_h2
    """)
    for mode in (1, 2, 0):
        isv = mode == 2
        a.label(f"ka_h{mode}")
        if mode == 2:
            a(f"""
            v_lshl_add_u32 v15, v{vG}, 4, s{sT}
            s_mul_i32 s{sT2}, s{sT2}, {VH}
            s_add_u32 s{sM}, s{sM}, s{sT2}
            v_lshrrev_b32 v{vT}, 1, v{vG}
            v_lshlrev_b32 v16, 8, v{vT}
            v_lshl_add_u32 v16, v{vT16}, 4, v16
            v_and_b32 v{vT}, 1, v{vG}
            v_lshl_add_u32 v16, v{vT}, 3, v16
            """)
        elif mode == 1:
            a(f"""
            s_lshl_b32 s{sT2}, s{sT2}, 8
            s_add_u32 s{sM}, s{sM}, s{sT2}
            v_lshrrev_b32 v{vT}, 1, v{vG}
            v_lshlrev_b32 v16, 9, v{vT}
            v_lshl_add_u32 v16, v{vT16}, 4, v16
            v_and_b32 v{vT}, 1, v{vG}
            v_lshl_add_u32 v16, v{vT}, 3, v16
            """)
        nr = 5 if mode else 3
        def h_reads(i, s):
            f = vFr + 12*s
            a(f"ds_read_b128 {vr(f,4)}, v{10+s} offset:{i*16384}")
            a(f"ds_read_b64_tr_b16 {vr(f+4,2)}, v{vW16} offset:{(4*i+s)*4096}")
            a(f"ds_read_b64_tr_b16 {vr(f+6,2)}, v{vW16} offset:{(4*i+s)*4096+512}")
            if mode:
                a(f"ds_read_b64_tr_b16 {vr(f+8,2)}, v{vWK} offset:{(4*i+s)*1024}")
                a(f"ds_read_b64_tr_b16 {vr(f+10,2)}, v{vWK} offset:{(4*i+s)*1024+128}")
        def m16(d, x, y, first):
            a(f"v_mfma_f32_16x16x32_bf16 {vr(d,4)}, {x}, {y}, {'0' if first else vr(d,4)}")
        for i in range(4):
            chunk_wait(i)
            for s in range(3): h_reads(i, s)
            chunk_next(i)
            for s in range(4):
                f = vFr + 12*s
                first = i == 0 and s == 0
                a(f"s_waitcnt lgkmcnt({nr*(min(s+2,3)-s)})")
                xa, wa, ka_, on = vr(f,4), vr(f+4,4), vr(f+8,4), vr(vOn4,4)
                m16(vGr, xa, xa, first)
                if s == 0: h_reads(i, 3)
                m16(vSum, on, xa, first)
                m16(vCs, on, wa, first)
                if mode:
                    p1, p2 = ((xa, ka_), (on, ka_)) if isv else ((ka_, xa), (ka_, on))
                    m16(vD, p1[0], p1[1], first)
                    m16(vD2, p2[0], p2[1], first)
        a(f"s_nop {1 if mode else 3}")
        for r in range(1, 4):
            a(f"s_mov_b32 exec_lo, {0x00100001 << r:#x}\ns_mov_b32 exec_hi, {0x10000100 << r:#x}")
            a(f"v_mov_b32 v{vGr}, v{vGr+r}")
        a(f"""
        s_mov_b32 exec_lo, 0x00f0000f
        s_mov_b32 exec_hi, 0xf0000f00
        v_mul_f32 v{vSum}, {f32(1/512)}, v{vSum}
        v_mul_f32 v{vGr}, {f32(1/512)}, v{vGr}
        v_fma_f32 v{vGr}, -v{vSum}, v{vSum}, v{vGr}
        v_max_f32 v{vGr}, 0, v{vGr}
        v_add_f32 v{vGr}, {f32(1e-5)}, v{vGr}
        v_rsq_f32 v{vGr}, v{vGr}
        ds_write_b32 v18, v{vSum}
        ds_write_b32 v18, v{vCs} offset:512
        ds_write_b32 v18, v{vGr} offset:256
        s_mov_b64 exec, -1
        s_waitcnt lgkmcnt(0)
        s_barrier
        """)
        if mode == 0:
            a.comment("one helper wave clears this workgroup's share of the flags")
            a(f"""
            s_cmp_lt_u32 s{sRL}, 128
            s_cbranch_scc1 ka_rl
            s_xor_b32 s{sT}, s{sTQ}, 1
            s_cmp_lg_u32 s{sJ}, s{sT}
            s_cbranch_scc1 ka_done
            s_lshl_b32 s{sT}, s2, 8
            s_add_u32 s{sT}, s{sT}, {WS_FLAG}
            v_lshlrev_b32 v{vT}, 2, v{vL}
            v_mov_b32 v{vT2}, 0
            buffer_store_dword v{vT2}, v{vT}, s[{WS}:{WS+3}], s{sT} offen sc1
            s_branch ka_done
            """)
            a.label("ka_rl")
            a(f"""
            v_bfe_u32 v{vRT}, v{vL}, 2, 3
            v_lshrrev_b32 v{vT}, 5, v{vL}
            v_lshl_add_u32 v{vRT}, v{vT}, 4, v{vRT}
            v_lshlrev_b32 v{vRT}, 7, v{vRT}
            v_and_b32 v{vT}, 3, v{vL}
            v_lshl_add_u32 v{vRT}, v{vT}, 5, v{vRT}
            v_add_u32 v{vRT}, {LDS_RO}, v{vRT}
            s_lshl_b32 s{sT}, s{sRL}, 12
            s_add_u32 s{sT}, s{sT}, {WS_WO}
            """)
            for b in range(4):
                for e in range(2): a(f"ds_read_b64_tr_b16 {vr(vFr+4*b+2*e,2)}, v{vRT} offset:{e*1024 + b*8}")
            for b in range(4):
                a(f"s_waitcnt lgkmcnt({6-2*b})\nbuffer_store_dwordx4 {vr(vFr+4*b,4)}, v{vKA}, s[{WS}:{WS+3}], s{sT} offen offset:{b*1024} sc1")
            continue
        if isv:
            a("ds_read_b128 v[40:43], v15\nds_read_b128 v[44:47], v15 offset:256")
        else:
            a("ds_read_b32 v40, v18\nds_read_b32 v44, v18 offset:256")
        a("s_waitcnt lgkmcnt(0)")
        for r in range(4):
            a(f"v_fma_f32 v{vD+r}, -v{vD2+r}, v{40+(r if isv else 0)}, v{vD+r}")
        for r in range(4):
            a(f"v_mul_f32 v{vD+r}, v{vD+r}, v{44+(r if isv else 0)}")
        a(f"""
        v_cvt_pk_bf16_f32 v{vD}, v{vD}, v{vD+1}
        v_cvt_pk_bf16_f32 v{vD+1}, v{vD+2}, v{vD+3}
        buffer_store_dwordx2 {vr(vD,2)}, v16, s[{WS}:{WS+3}], s{sM} offen offset:{1024 if isv else 0} sc1
        """)
        if isv:
            a(f"""
            s_mov_b64 exec, 2
            v_mov_b32 v{vOn4}, 0
            v_mov_b32 v{vOn4+1}, 0
            v_mov_b32 v{vOn4+2}, 0
            v_mov_b32 v{vOn4+3}, 0
            s_mov_b64 exec, 3
            buffer_store_dwordx4 {vr(vOn4,4)}, v16, s[{WS}:{WS+3}], s{sM} offen offset:1536 sc1
            s_mov_b64 exec, -1
            """)
        a("s_branch ka_done")
    a.label("ka_done")
    if opt.get("stamp"):
        stamp(6)
        a("s_waitcnt vmcnt(0)")
        stamp(7)
        a(f"""
        s_waitcnt lgkmcnt(0)
        s_lshl_b32 s{sT}, s2, 3
        s_add_u32 s{sT}, s{sT}, s{sW}
        s_lshl_b32 s{sT}, s{sT}, 5
        s_add_u32 s{sT}, s{sT}, {WS_DBG}
        v_mov_b32 v1, 0
        """)
        for i in range(8): a(f"v_mov_b32 v{4+i}, s{60+2*i}")
        a(f"""
        buffer_store_dwordx4 v[4:7], v1, s[{WS}:{WS+3}], s{sT} offen
        buffer_store_dwordx4 v[8:11], v1, s[{WS}:{WS+3}], s{sT} offen offset:16
        """)
    if opt.get("merge"):
        a(f"""
        s_load_dwordx2 s[4:5], s[0:1], 80
        s_waitcnt vmcnt(0) lgkmcnt(0)
        s_barrier
        s_mov_b32 s6, 256
        s_mov_b32 s7, 0x00020000
        s_cmp_lg_u32 s{sW}, 0
        s_cbranch_scc1 ka_gw
        s_mov_b64 exec, 1
        v_mov_b32 v2, 1
        v_mov_b32 v3, 0
        buffer_atomic_add v2, v3, s[4:7], 0 offen offset:64 sc0 sc1
        s_waitcnt vmcnt(0)
        v_readfirstlane_b32 s8, v2
        v_mov_b32 v2, 1
        s_mov_b32 s9, 0x8000
        s_cmp_lg_u32 s8, 255
        s_cbranch_scc1 ka_gp
        buffer_store_dword v2, v3, s[4:7], 0 offen offset:128 sc1
        """)
        a.label("ka_gp")
        a("""
        s_sleep 4
        buffer_load_dword v2, v3, s[4:7], 0 offen offset:128 sc1
        s_waitcnt vmcnt(0)
        v_readfirstlane_b32 s8, v2
        s_sub_u32 s9, s9, 1
        s_cbranch_scc1 ka_go
        s_cmp_eq_u32 s8, 0
        s_cbranch_scc1 ka_gp
        """)
        a.label("ka_go")
        a("s_mov_b64 exec, -1")
        a.label("ka_gw")
        a("s_barrier\ns_branch kb_entry")
    a.label("ka_exit")
    a("s_endpgm")
```

```python
from asmlib import *
from layout import *
from ka import srd

KB_LDS = 163840
L_STG = 135168
L_OXH = L_STG
L_OXL = 159744
L_LNS = 162816
L_RED = 98304
FR = 114688
SPIN = 1 << 15

STAMPS = {"w0-3": ["start", "B1", "attn", "B4", "st1", "B5", "st2", "B6", "stored", "acked", "BA", "seen", "BB", "T0", "end"],
          "w4-7": ["start", "B1", "B3", "rl", "rlseen", "B4", "attn", "B6", "BA", "BC", "seen0", "seen6", "mm", "red", "end"]}

WS, X, OUT, RA, RB, RD = 28, 32, 36, 40, 44, 48
sW, sJ, sGRP, sMEM, sT, sT2, sT3, sO, sO2, sCNT, sMK, sMODE = 52, 53, 54, 55, 56, 57, 58, 59, 60, 61, 62, 98
vL, vL16, vT, vT2 = 1, 2, 3, 0

vQ, vK, vV, vP, vKA, vVA, vOXW, vIX, vS, vO, vC = 4, 8, 16, 32, 40, 43, 46, 47, 48, 80, 96

class VM:
    def __init__(self): self.n = 0; self.pos = {}
    def issue(self, key=None):
        self.n += 1
        if key is not None: self.pos[key] = self.n
    def cnt(self, key): return self.n - self.pos[key]

def ws(): return f"s[{WS}:{WS+3}]"

def gen_kb(a, name, opt):
    def stamp(i, wait=True, inner=False):
        if opt.get("astamp") and 7 <= i <= 13 and not inner: return
        if opt.get("pstamp") and 1 <= i <= 8 and not inner: return
        if opt.get("stamp"):
            a(f"{'s_memtime' if opt.get('cyc') else 's_memrealtime'} s[{64+2*i}:{65+2*i}]")
            if wait: a("s_waitcnt lgkmcnt(0)")
    def mf32(d, x, y, c): a(f"v_mfma_f32_32x32x16_bf16 {vr(d,16)}, {vr(x,4)}, {vr(y,4)}, {c if isinstance(c,str) else vr(c,16)}")

    def sm32(x, y): a(f"v_smfmac_f32_32x32x32_bf16 {vr(vO,16)}, {vr(x,4)}, {vr(y,8)}, v{vIX}")
    def attention(tag, hooks, extras):
        lg = VM()
        def rd_k(t):
            if t >= 64: return
            b, o = divmod(t, 30)
            a(f"ds_read_b128 {vr(vK+4*(t&1),4)}, v{vKA+b} offset:{o*KVT}"); lg.issue(("k", t))
        def rd_v(t, u):
            if t >= 64: return
            b, o = divmod(t, 30)
            a(f"ds_read_b128 {vr(vV+8*(t&1)+4*u,4)}, v{vVA+b} offset:{o*KVT+u*VH}"); lg.issue(("v", t, u))
        rd_k(0); rd_k(1); rd_v(0, 0); rd_v(0, 1); rd_v(1, 0)
        a(f"s_waitcnt lgkmcnt({lg.cnt(('k', 0))})")
        mf32(vS, vK, vQ, "0")
        rd_k(2)
        a("s_nop 10")
        for t in range(64):
            S, N = vS + 16*(t & 1), vS + 16*((t+1) & 1)
            ex = list(extras.get(t, []))
            def e(*idx):
                for i in idx: a(f"v_exp_f32 v{S+i}, v{S+i}")
            def extra():
                if ex: ex.pop(0)()
            if opt.get("astamp") and t and t % 8 == 0: stamp(6 + t//8, wait=False, inner=True)
            if t in hooks: hooks[t]()
            e(0, 1)
            need = [("v", t, 0)] + ([("v", t-1, 1)] if t else []) + ([("k", t+1)] if t < 63 else [])
            a(f"s_waitcnt lgkmcnt({min(lg.cnt(k) for k in need)})")
            if t > 0: sm32(vV + 8*((t-1) & 1) + 4, N + 8)
            rd_v(t + 1, 1); extra()
            e(2, 3, 4)
            if t < 63: mf32(N, vK + 4*((t+1) & 1), vQ, "0")
            rd_k(t + 3); extra()
            e(5, 6, 7, 8, 9)
            sm32(vV + 8*(t & 1), S)
            rd_v(t + 2, 0); extra()
            e(10, 11, 12, 13, 14, 15)
            assert not ex
        a("s_waitcnt lgkmcnt(0)\ns_nop 0")
        sm32(vV + 8 + 4, vS + 16 + 8)
        a(f"""
        s_mov_b32 s{sT}, {f32(2.0**-64)}
        s_mov_b32 s{sT2}, {f32(2.0**64)}
        s_nop 11
        v_cmp_lt_f32 vcc, s{sT}, v{vO+8}
        v_cmp_gt_f32 s[96:97], s{sT2}, v{vO+8}
        v_rcp_f32 v{vT}, v{vO+8}
        s_and_b64 vcc, vcc, s[96:97]
        s_cmp_eq_u64 vcc, -1
        s_cbranch_scc0 slow_{tag}
        """)
        a.label(f"norm_{tag}")
        for r in range(8): a(f"v_mul_f32 v{vO+r}, v{vO+r}, v{vT}")
        for r in range(4): a(f"v_cvt_pk_bf16_f32 v{vP+r}, v{vO+2*r}, v{vO+2*r+1}")
        a(f"ds_write_b128 v{vOXW}, {vr(vP,4)}\ns_waitcnt lgkmcnt(0)")

    def slow_path(tag):
        a.label(f"slow_{tag}")
        vM = vC
        a(f"v_mov_b32 v{vM}, 0xff800000\ns_mov_b32 s{sT}, {WS_KV}")
        a.label(f"slow1_{tag}")
        a(f"buffer_load_dwordx4 {vr(vK,4)}, v{vKA}, {ws()}, s{sT} offen\ns_waitcnt vmcnt(0)")
        mf32(vS, vK, vQ, "0")
        a(f"s_add_u32 s{sT}, s{sT}, {KVT}\ns_nop 11")
        for r in range(8): a(f"v_max3_f32 v{vM}, v{vM}, v{vS+2*r}, v{vS+2*r+1}")
        a(f"""
        s_cmp_lg_u32 s{sT}, {WS_KV + 64*KVT}
        s_cbranch_scc1 slow1_{tag}
        v_mov_b32 v{vM+1}, v{vM}
        s_nop 1
        v_permlane32_swap_b32 v{vM}, v{vM+1}
        v_max_f32 v{vM}, v{vM}, v{vM+1}
        v_sub_f32 v{vM}, 0, v{vM}
        """)
        for r in range(1, 16): a(f"v_mov_b32 v{vM+r}, v{vM}")
        for r in range(16): a(f"v_mov_b32 v{vO+r}, 0")
        a(f"s_mov_b32 s{sT}, {WS_KV}")
        a.label(f"slow2_{tag}")
        a(f"""
        buffer_load_dwordx4 {vr(vK,4)}, v{vKA}, {ws()}, s{sT} offen
        buffer_load_dwordx4 {vr(vV,4)}, v{vVA}, {ws()}, s{sT} offen
        buffer_load_dwordx4 {vr(vV+4,4)}, v{vVA}, {ws()}, s{sT} offen offset:{VH}
        s_waitcnt vmcnt(0)
        """)
        mf32(vS, vK, vQ, vM)
        a(f"s_add_u32 s{sT}, s{sT}, {KVT}\ns_nop 11")
        for r in range(16): a(f"v_exp_f32 v{vS+r}, v{vS+r}")
        a("s_nop 1")
        sm32(vV, vS)
        sm32(vV + 4, vS + 8)
        a(f"""
        s_nop 15
        s_cmp_lg_u32 s{sT}, {WS_KV + 64*KVT}
        s_cbranch_scc1 slow2_{tag}
        v_rcp_f32 v{vT}, v{vO+8}
        s_branch norm_{tag}
        """)

    far = []
    def poll(tag, vdst, vaddr, soff, need, mask, sleep=0, fresh=False):
        load = f"buffer_load_dword v{vdst}, v{vaddr}, {ws()}, s{soff} offen sc1\ns_waitcnt vmcnt(0)"
        a(f"s_mov_b32 s{sCNT}, {SPIN}")
        if fresh: a(load)
        a.label(f"poll_{tag}")
        a(f"v_cmp_le_u32 vcc, {need}, v{vdst}")
        if mask is None:
            a("s_cmp_eq_u64 vcc, -1")
        else:
            a(f"s_and_b32 s{sT}, vcc_lo, s{mask}\ns_cmp_eq_u32 s{sT}, s{mask}")
        a(f"s_cbranch_scc0 again_{tag}")
        a.label(f"done_{tag}")
        far.append(f"again_{tag}:\ns_sub_u32 s{sCNT}, s{sCNT}, 1\ns_cbranch_scc1 done_{tag}\n" + (f"s_sleep {sleep}\n" if sleep else "") + load + f"\ns_branch poll_{tag}")
    def flush_far():
        for f in far: a(f)
        far.clear()

    a.label(name)
    a(f"""
    s_cmp_ge_u32 s2, 256
    s_cbranch_scc1 kb_exit
    s_load_dwordx2 s[24:25], s[0:1], 88
    s_load_dwordx16 s[4:19], s[0:1], 0
    s_load_dwordx4 s[20:23], s[0:1], 64
    """)
    stamp(0, wait=False)
    a(f"""
    v_lshrrev_b32 v{vT}, 6, v0
    v_and_b32 v{vL}, 63, v0
    s_lshr_b32 s{sT}, s2, 3
    v_readfirstlane_b32 s{sW}, v{vT}
    s_and_b32 s{sMEM}, s{sT}, 15
    s_lshr_b32 s{sT}, s{sT}, 4
    s_and_b32 s{sGRP}, s2, 7
    s_lshl_b32 s{sGRP}, s{sGRP}, 1
    s_add_u32 s{sGRP}, s{sGRP}, s{sT}
    v_lshlrev_b32 v{vL16}, 4, v{vL}
    s_and_b32 s{sJ}, s{sW}, 3
    s_lshl_b32 s{sT}, s{sGRP}, 4
    s_add_u32 s{sT}, s{sT}, s{sMEM}
    s_lshl_b32 s{sT}, s{sT}, 3
    s_add_u32 s{sT}, s{sT}, s{sW}
    s_lshl_b32 s{sT}, s{sT}, 10
    s_lshl_b32 s{sO}, s{sJ}, 10
    s_waitcnt lgkmcnt(0)
    """)
    srd(a, WS, 24, WS_SIZE)
    a(f"""
    buffer_load_dwordx4 {vr(vQ,4)}, v{vL16}, {ws()}, s{sT} offen
    s_cmp_ge_u32 s{sW}, 4
    s_cbranch_scc1 kb_grpb
    """)
    def attn_addrs(oxbase):
        a(f"""
        v_mov_b32 v{vKA}, v{vL16}
        v_add_u32 v{vKA+1}, {30*KVT}, v{vL16}
        v_add_u32 v{vKA+2}, {60*KVT}, v{vL16}
        v_lshrrev_b32 v{vT}, 5, v{vL}
        v_and_b32 v{vVA}, 15, v{vL}
        v_lshlrev_b32 v{vVA}, 4, v{vVA}
        v_lshl_add_u32 v{vVA}, v{vT}, 8, v{vVA}
        s_mov_b32 exec_lo, 0xffff0000
        s_mov_b32 exec_hi, 0xffff0000
        v_mov_b32 v{vVA}, 0x210
        s_mov_b32 exec_lo, 0x00110000
        s_mov_b32 exec_hi, 0x00110000
        v_mov_b32 v{vVA}, 0x200
        s_mov_b64 exec, -1
        v_mov_b32 v{vIX}, 0xdddddddd
        v_add_u32 v{vVA}, 0x400, v{vVA}
        v_add_u32 v{vVA+1}, {30*KVT}, v{vVA}
        v_add_u32 v{vVA+2}, {60*KVT}, v{vVA}
        s_lshl_b32 s{sT}, s{sJ}, 10
        s_add_u32 s{sT}, s{sT}, {oxbase}
        v_lshl_add_u32 v{vOXW}, v{vT}, 7, s{sT}
        v_bfe_u32 v{vT}, v{vL}, 3, 2
        v_lshl_add_u32 v{vOXW}, v{vT}, 8, v{vOXW}
        v_and_b32 v{vT}, 7, v{vL}
        v_lshl_add_u32 v{vOXW}, v{vT}, 4, v{vOXW}
        """)
        for r in range(16): a(f"v_mov_b32 v{vO+r}, 0")
    R1, R2 = opt.get("r1", 3), opt.get("r2", 10)
    def first_tile_needing(nbytes):
        for t in range(64):
            if (t + 3)*KVT + 1024 > nbytes: return t
    R3 = 22
    TB2, TB3, TB4 = first_tile_needing(R1*4096), first_tile_needing(R2*4096), first_tile_needing(R3*4096)

    a(f"s_setprio 2\ns_lshl_b32 s{sO}, s{sJ}, 17\ns_add_u32 s{sO}, s{sO}, {WS_WO}")
    attn_addrs(L_OXL)
    a("s_waitcnt vmcnt(0)\ns_barrier")
    stamp(1)
    vAc, vB, vOXR, vHO, vLW, vLR, vFO, vWR = 8, 40, 52, 53, 54, 55, 56, 59
    wreg = lambda f: 64 + 4*((f + 12) % 48)
    vm = VM()
    def wo_load(f):
        if f and f % 4 == 0: a(f"s_add_u32 s{sO}, s{sO}, 0x1000")
        a(f"buffer_load_dwordx4 {vr(wreg(f),4)}, v{vL16}, {ws()}, s{sO} offen offset:{(f%4)*1024}"); vm.issue(f)
    TRY = opt.get("try", 22)
    bar = lambda: a("s_barrier")
    extras = {TRY + i: [lambda f=2*i: wo_load(f), lambda f=2*i+1: wo_load(f)] for i in range(18)}
    attention("a", {TB2: bar, TB3: bar, TB4: bar}, extras)
    stamp(2)
    a(f"s_setprio {opt.get('hprio', 2)}\ns_barrier")
    stamp(3)
    srd(a, X, 4, 2048*1024)
    a(f"""
    v_and_b32 v{vT}, 7, v{vL}
    v_lshrrev_b32 v{vT2}, 4, v{vL}
    v_lshlrev_b32 v60, 10, v{vT}
    v_lshl_add_u32 v60, v{vT2}, 6, v60
    s_lshl_b32 s{sT}, s{sGRP}, 4
    s_add_u32 s{sT}, s{sT}, s{sMEM}
    s_lshl_b32 s{sT}, s{sT}, 13
    s_lshl_b32 s{sT2}, s{sJ}, 8
    s_add_u32 s{sT}, s{sT}, s{sT2}
    """)
    vX = wreg(44)
    for i in range(4): a(f"buffer_load_dwordx4 {vr(vX+4*i,4)}, v60, s[{X}:{X+3}], s{sT} offen offset:{16*i}")
    a(f"""
    v_and_b32 v61, 15, v{vL}
    v_lshlrev_b32 v61, 2, v61
    s_lshl_b32 s{sT}, s{sGRP}, 7
    s_add_u32 s{sT}, s{sT}, {WS_FLAG + FL_XID}
    buffer_load_dword v62, v61, {ws()}, s{sT} offen sc1
    """)
    for f in range(36, 44): wo_load(f)
    a(f"""
    v_lshlrev_b32 v{vLR}, 4, v{vT}
    v_lshl_add_u32 v{vOXR}, v{vT2}, 7, v{vLR}
    v_add_u32 v{vOXR}, {L_OXH}, v{vOXR}
    v_lshrrev_b32 v{vT2}, 3, v{vL}
    v_lshl_add_u32 v{vHO}, v{vT2}, 10, v{vLR}
    v_add_u32 v{vLR}, {L_LNS}, v{vLR}
    v_lshrrev_b32 v{vT2}, 5, v{vL}
    v_lshl_add_u32 v{vLW}, v{vT2}, 7, v{vLR}
    s_lshl_b32 s{sT}, s{sJ}, 2
    v_add_u32 v{vLW}, s{sT}, v{vLW}
    s_lshl_b32 s{sCNT}, s{sJ}, 14
    s_add_u32 s{sCNT}, s{sCNT}, 0x8000
    v_add_u32 v{vWR}, s{sCNT}, v{vL16}
    s_getreg_b32 s{sT}, hwreg(HW_REG_XCC_ID, 0, 4)
    s_add_u32 s{sT}, s{sT}, 1
    s_waitcnt vmcnt(8)
    v_cmp_eq_u32 vcc, s{sT}, v62
    v_mov_b32 v{vFO}, 0x40000000
    v_mov_b32 v{vFO+1}, 0x40000000
    s_cmp_eq_u64 vcc, -1
    s_cselect_b32 s{sMODE}, {0 if opt.get("slowmode") else 1}, 0
    s_cmp_eq_u32 s{sMODE}, 1
    s_cselect_b32 s{sT}, 0, 0x40000000
    s_cselect_b32 s{sT2}, 0x40000000, 0
    v_writelane_b32 v{vFO}, s{sT}, 0
    v_writelane_b32 v{vFO+1}, s{sT2}, 0
    """)
    for i in range(16):
        a(f"v_lshlrev_b32 v{vAc+2*i}, 16, v{vX+i}\nv_and_b32 v{vAc+2*i+1}, 0xffff0000, v{vX+i}")
    for f in range(44, 48): wo_load(f)
    a(f"""
    s_mul_i32 s{sMK}, s{sMEM}, {7*32768}
    s_and_b32 s{sT2}, s{sGRP}, 1
    s_lshl_b32 s{sT2}, s{sT2}, 2
    s_add_u32 s{sT2}, s{sT2}, s{sJ}
    s_mul_i32 s{sT2}, s{sT2}, {24*1024}
    s_add_u32 s{sMK}, s{sMK}, s{sT2}
    s_add_u32 s{sMK}, s{sMK}, {WS_WGU + 32768}
    v_mov_b32 v63, 0x40000000
    s_mov_b64 exec, 0xffff
    v_lshlrev_b32 v63, 7, v{vL}
    s_mov_b64 exec, -1
    """)
    def oproj(k0):
        lg = VM()
        def ox_read(ks):
            off = (L_OXL - L_OXH) + ks*512 if ks < 8 else (ks - 8)*512
            a(f"ds_read_b128 {vr(vB+4*(ks%3),4)}, v{vOXR} offset:{off}"); lg.issue(("o", ks))
        ox_read(k0); ox_read(k0 + 1)
        for ks in range(k0, k0 + 8):
            a(f"s_waitcnt lgkmcnt({lg.cnt(('o', ks))})" + (f" vmcnt({vm.cnt(8*ks+7)})" if ks < 8 else ""))
            for jt in range(8):
                f = 8*ks + jt
                a(f"v_mfma_f32_16x16x32_bf16 {vr(vAc+4*jt,4)}, {vr(wreg(f),4)}, {vr(vB+4*(ks%3),4)}, {vr(vAc+4*jt,4)}")
                if jt == 0 and ks + 2 < k0 + 8: ox_read(ks + 2)
                if f + 48 < 112:
                    wo_load(f + 48)
                    if f % 5 == 2 and f//5 < 12:
                        a(f"buffer_load_dword v62, v63, {ws()}, s{sMK} offen offset:{(f//5 & 1)*2048} sc1"); vm.issue()
                        if f//5 & 1: a(f"s_add_u32 s{sMK}, s{sMK}, 0x1000")
                elif 72 <= f < 104 and f & 1:
                    g = 112 + (f - 72)//2
                    a(f"ds_read_b128 {vr(wreg(g),4)}, v{vWR} offset:{(g-112)*1024}"); lg.issue()
    oproj(0)
    stamp(4)
    slot = [0, 3, 1, 2, 4, 0, 3]
    sG = 63
    def gu_base():
        a(f"""
        s_mul_i32 s{sG}, s{sMEM}, {7*32768}
        s_lshl_b32 s{sT3}, s{sJ}, 13
        s_add_u32 s{sG}, s{sG}, s{sT3}
        s_add_u32 s{sG}, s{sG}, {WS_WGU}
        """)
    def gu_dma(t, lo=0, hi=8):
        for i in range(lo, hi):
            if i % 4 == 0 or i == lo:
                a(f"s_add_u32 m0, s{sT3}, {slot[t]*32768 + (i//4)*4096}\ns_add_u32 s{sT}, s{sG}, {t*32768 + (i//4)*4096}")
            a(f"buffer_load_dwordx4 v{vL16}, {ws()}, s{sT} offen offset:{(i%4)*1024} sc1 lds")
    sHN, sFL = sO2, 27
    a(f"""
    s_lshl_b32 s{sT}, s{sGRP}, 2
    s_lshr_b32 s{sT2}, s{sMEM}, 2
    s_add_u32 s{sT}, s{sT}, s{sT2}
    s_lshl_b32 s{sFL}, s{sT}, 8
    s_lshl_b32 s{sHN}, s{sT}, 15
    s_lshl_b32 s{sT}, s{sJ}, 13
    s_add_u32 s{sHN}, s{sHN}, s{sT}
    s_and_b32 s{sT2}, s{sMEM}, 3
    s_lshl_b32 s{sT}, s{sT2}, 7
    s_add_u32 s{sHN}, s{sHN}, s{sT}
    s_add_u32 s{sHN}, s{sHN}, {WS_HN}
    s_lshl_b32 s{sT2}, s{sT2}, 2
    s_add_u32 s{sT2}, s{sT2}, s{sJ}
    s_lshl_b32 s{sT2}, s{sT2}, 2
    s_add_u32 s{sFL}, s{sFL}, s{sT2}
    s_add_u32 s{sFL}, s{sFL}, {WS_FLAG + FL_HN}
    s_add_u32 s{sT}, s{sFL}, {FL_ACT - FL_HN}
    buffer_load_dword v62, v{vHO}, {ws()}, s{sHN} offen sc1
    buffer_load_dword v62, v{vHO}, {ws()}, s{sHN} offen offset:512 sc1
    buffer_load_dword v62, v{vFO}, {ws()}, s{sFL} offen sc1
    buffer_load_dword v62, v{vFO}, {ws()}, s{sT} offen sc1
    """)
    AL2 = opt.get("actl2", 0)
    if AL2:
        a(f"""
        s_lshl_b32 s{sT}, s{sGRP}, 2
        s_add_u32 s{sT}, s{sT}, s{sJ}
        s_mul_i32 s{sT}, s{sT}, {FR}
        s_mul_i32 s{sT2}, s{sMEM}, {7*1024}
        s_add_u32 s{sT}, s{sT}, s{sT2}
        s_add_u32 s{sT}, s{sT}, {WS_ACT + (7 - AL2)*1024}
        v_lshlrev_b32 v63, 7, v{vL}
        s_mov_b32 exec_lo, {((1 << 8*AL2) - 1) & 0xffffffff:#x}
        s_mov_b32 exec_hi, {((1 << 8*AL2) - 1) >> 32:#x}
        buffer_load_dword v62, v63, {ws()}, s{sT} offen sc1
        s_mov_b64 exec, -1
        """)
    gu_base()
    a("s_barrier")
    for i in range(16):
        if i % 4 == 0: a(f"s_add_u32 m0, s{sCNT}, {i*1024}\ns_add_u32 s{sO}, s{sO}, 0x1000")
        a(f"buffer_load_dwordx4 v{vL16}, {ws()}, s{sO} offen offset:{(i%4)*1024} lds")
    gu_dma(0)
    a("s_waitcnt vmcnt(0)\ns_setprio 3\ns_barrier")
    stamp(5)
    oproj(8)
    stamp(6)
    a("s_nop 2\ns_mov_b32 exec_lo, 0xff00ff00\ns_mov_b32 exec_hi, 0xff00ff00")
    for i in range(16): a(f"v_mov_b32 v{vAc+i}, v{vAc+16+i}")
    a("s_mov_b64 exec, -1")
    s0, s1, q0, q1, vH, vN = 64, 65, 66, 67, 120, 80
    a(f"v_add_f32 v{s0}, v{vAc}, v{vAc+2}\nv_add_f32 v{s1}, v{vAc+1}, v{vAc+3}")
    a(f"v_mul_f32 v{q0}, v{vAc}, v{vAc}\nv_mul_f32 v{q1}, v{vAc+1}, v{vAc+1}")
    for i in range(2, 16):
        if i >= 4: a(f"v_add_f32 v{s0+(i&1)}, v{s0+(i&1)}, v{vAc+i}")
        a(f"v_fmac_f32 v{q0+(i&1)}, v{vAc+i}, v{vAc+i}")
    a(f"""
    v_add_f32 v{s0}, v{s0}, v{s1}
    v_add_f32 v{q0}, v{q0}, v{q1}
    v_cvt_pk_bf16_f32 v{vH}, v{vAc}, v{vAc+1}
    v_cvt_pk_bf16_f32 v{vH+1}, v{vAc+2}, v{vAc+3}
    v_permlane32_swap_b32 v{s0}, v{q0}
    v_add_f32 v{s0}, v{s0}, v{q0}
    v_cvt_pk_bf16_f32 v{vH+2}, v{vAc+4}, v{vAc+5}
    v_cvt_pk_bf16_f32 v{vH+3}, v{vAc+6}, v{vAc+7}
    v_add_f32_dpp v{s0}, v{s0}, v{s0} row_ror:8 row_mask:0xf bank_mask:0xf
    v_mov_b32 v{s1}, v{s0}
    v_cvt_pk_bf16_f32 v{vH+4}, v{vAc+8}, v{vAc+9}
    v_cvt_pk_bf16_f32 v{vH+5}, v{vAc+10}, v{vAc+11}
    v_permlane16_swap_b32 v{s0}, v{s1}
    v_add_f32 v{s0}, v{s0}, v{s1}
    ds_write_b32 v{vLW}, v{s0}
    v_cvt_pk_bf16_f32 v{vH+6}, v{vAc+12}, v{vAc+13}
    v_cvt_pk_bf16_f32 v{vH+7}, v{vAc+14}, v{vAc+15}
    s_waitcnt lgkmcnt(0)
    s_barrier
    """)
    stamp(7)
    a(f"""
    ds_read_b128 v[64:67], v{vLR}
    ds_read_b128 v[68:71], v{vLR} offset:128
    s_add_u32 s26, s{sHN}, {WS_H - WS_HN}
    v_mov_b32 v58, 1
    s_waitcnt lgkmcnt(0)
    v_add_f32 v64, v64, v65
    v_add_f32 v68, v68, v69
    v_add_f32 v66, v66, v67
    v_add_f32 v70, v70, v71
    v_add_f32 v64, v64, v66
    v_add_f32 v68, v68, v70
    v_mul_f32 v64, {f32(1/512)}, v64
    v_mul_f32 v68, {f32(1/512)}, v68
    v_fma_f32 v68, -v64, v64, v68
    v_max_f32 v68, 0, v68
    v_add_f32 v68, {f32(1e-5)}, v68
    v_rsq_f32 v68, v68
    s_nop 0
    v_mul_f32 v68, {f32(LOG2E)}, v68
    v_mul_f32 v64, v64, v68
    """)
    for i in range(16): a(f"v_fma_f32 v{vAc+i}, v{vAc+i}, v68, -v64")
    a(f"s_cmp_eq_u32 s{sMODE}, 1")
    for i in range(8): a(f"v_cvt_pk_bf16_f32 v{vN+i}, v{vAc+2*i}, v{vAc+2*i+1}")
    a("s_cbranch_scc0 kb_hn_far")
    def hn_store(fl):
        for h in range(2): a(f"buffer_store_dwordx4 {vr(vN+4*h,4)}, v{vHO}, {ws()}, s{sHN} offen offset:{512*h}{fl}")
    hn_store("")
    a.label("kb_hn_back")
    stamp(8)
    vPL, vPA, vA0, vAcc, vAR, vE, vPk, vHN = 4, 5, 6, 16, 64, 96, 112, 128
    sAC, sAF = sO, sMK
    a(f"""
    s_lshl_b32 s{sT}, s{sGRP}, 2
    s_add_u32 s{sT}, s{sT}, s{sJ}
    s_mul_i32 s{sAC}, s{sT}, {FR}
    s_mul_i32 s{sT2}, s{sMEM}, {7*1024}
    s_add_u32 s{sAC}, s{sAC}, s{sT2}
    s_add_u32 s{sAC}, s{sAC}, {WS_ACT}
    s_lshl_b32 s{sG}, s{sT}, 15
    s_add_u32 s{sG}, s{sG}, {WS_HN}
    s_lshl_b32 s{sT}, s{sT}, 8
    s_lshl_b32 s{sT2}, s{sMEM}, 2
    s_add_u32 s{sAF}, s{sT}, s{sT2}
    s_add_u32 s{sAF}, s{sAF}, {WS_FLAG + FL_ACT}
    s_add_u32 s{sT2}, s{sT}, {WS_FLAG + FL_HN}
    v_and_b32 v{vPA}, 15, v{vL}
    v_lshlrev_b32 v{vPA}, 2, v{vPA}
    v_mov_b32 v{vPL}, 0
    v_add_u32 v{vA0+1}, 0x10000, v{vL16}
    v_mov_b32 v9, v{vFO}
    v_mov_b32 v10, v{vFO+1}
    v_mov_b32 v13, v{vHO}
    s_cmp_eq_u32 s{sMODE}, 1
    s_cselect_b32 s{sT}, 0, 0x40000000
    s_cselect_b32 s{sCNT}, 0x40000000, 0
    v_add_u32 v14, s{sT}, v{vL16}
    v_add_u32 v15, s{sCNT}, v{vL16}
    v_add_u32 v{vA0+2}, 0x20000, v{vL16}
    s_waitcnt vmcnt(0)
    """)
    stamp(9)
    vFO2, vFV, vHO2 = 9, 11, 13
    def flag(v, soff):
        return f"buffer_store_dword v{v}, v{vFO2}, {ws()}, s{soff} offen\nbuffer_store_dword v{v}, v{vFO2+1}, {ws()}, s{soff} offen sc1"
    a(flag(58, sFL))
    a("s_barrier")
    stamp(10)
    poll("hn", vPL, vPA, sT2, 1, None, fresh=True)
    stamp(11)
    vm = VM()
    def hn_load(s):
        if s and s % 4 == 0: a(f"s_add_u32 s{sG}, s{sG}, 0x1000")
        a(f"buffer_load_dwordx4 {vr(vHN+4*s,4)}, v{vL16}, {ws()}, s{sG} offen offset:{(s%4)*1024} sc1"); vm.issue(("hn", s))
    HL = opt.get("hl", 14)
    for s in range(HL): hn_load(s)
    seq = [(t, s) for s in range(32) for t in (0, 1)] + [(t, s) for t in range(2, 7) for s in range(32)]
    LA = 7
    def a_read(n):
        t, s = seq[n]
        base = {0: vL16, 1: vA0+1, 2: vA0+2}[slot[t] >> 1]
        a(f"ds_read_b128 {vr(vAR+4*(n%8),4)}, v{base} offset:{(slot[t]&1)*32768 + s*1024}")
    sLG = sT3
    a(f"s_mov_b32 s{sLG}, {f32(LOG2E)}")
    def epilogue(t):
        A, pk = vAcc + 16*(t % 3), vPk + 4*(t & 1)
        ops = []
        for r in range(8): ops.append(f"v_exp_f32 v{vE+r}, -v{A+r}")
        for r in range(8): ops.append(f"v_fma_f32 v{vE+r}, v{vE+r}, s{sLG}, s{sLG}")
        for r in range(8): ops.append(f"v_rcp_f32 v{vE+r}, v{vE+r}")
        for r in range(8): ops.append(f"v_mul_f32 v{vE+r}, v{vE+r}, v{A+8+r}")
        for r in range(4): ops.append(f"v_cvt_pk_bf16_f32 v{pk+r}, v{vE+2*r}, v{vE+2*r+1}")
        return ops
    def act_store(t):
        if t == 4: a(f"s_add_u32 s{sAC}, s{sAC}, 0x1000")
        for va, fl in (((14, ""), (15, " sc1")) if t >= 7 - AL2 else ((vL16, " sc1"),)):
            a(f"buffer_store_dwordx4 {vr(vPk+4*(t&1),4)}, v{va}, {ws()}, s{sAC} offen offset:{(t%4)*1024}{fl}"); vm.issue(("st", t))
    def publish(n):
        a(f"s_waitcnt vmcnt({vm.cnt(('st', n-1))})")
        a(flag(vFV + (n & 1), sAF)); vm.issue(); vm.issue()
    cost = lambda op: 8 if op.startswith(("v_exp", "v_rcp")) else 4
    for n in range(LA): a_read(n)
    pend = []
    PUB = {(3, 30): 2, (5, 30): 4, (6, 30): 5}
    for n, (t, s) in enumerate(seq):
        if t >= 2 and s == 4:
            for te in ([0, 1] if t == 2 else [t - 1]):
                pend += [("v", o) for o in epilogue(te)] + [("m", te)]
        w = f"lgkmcnt({min(LA - 1, len(seq) - 1 - n)})"
        if n < 64 and t == 0: w += f" vmcnt({vm.cnt(('hn', s))})"
        a("s_waitcnt " + w)
        if opt.get("pstamp") and ((s == 0 and t != 1) or (t, s) in ((0, 8), (0, 16))): stamp(1 + s//8 if t == 0 else t + 2, wait=False, inner=True)
        A = vAcc + 16*(t % 3)
        mf32(A, vAR + 4*(n % 8), vHN + 4*s, "0" if s == 0 else A)
        if n + LA < len(seq):
            if (t, s) == (3, opt.get("bc1", 16)): a(f"s_waitcnt vmcnt({vm.cnt('h')})\ns_barrier")
            if (t, s) in ((4, opt.get("bc2", 6)), divmod(opt.get("bc3", 196), 32)): a("s_barrier")
            a_read(n + LA)
        if t == 0 and s + HL < 32: hn_load(s + HL)
        if t == 1 and s in (20, 21):
            a(f"buffer_store_dwordx4 {vr(vH+4*(s-20),4)}, v{vHO2}, {ws()}, s26 offen offset:{512*(s-20)} sc1"); vm.issue("h")
        if (t, s) == (1, 31):
            a("s_barrier"); stamp(12, wait=False)
        if (t, s + 1) in PUB: a(f"v_mov_b32 v{vFV + (PUB[(t, s+1)] & 1)}, {PUB[(t, s+1)]}")
        if (t, s) in PUB: publish(PUB[(t, s)])
        elif pend and pend[0][0] == "m": act_store(pend.pop(0)[1])
        else:
            budget = 16
            while pend and pend[0][0] == "v" and budget >= cost(pend[0][1]):
                budget -= cost(pend[0][1]); a(pend.pop(0)[1])
        if s == 31: assert not pend or t < 2, (t, len(pend))
    stamp(13)
    a(f"v_mov_b32 v{vFV}, 6\ns_nop 10")
    for o in epilogue(6): a(o)
    act_store(6)
    if opt.get("pub6", 1): publish(6)
    a(f"v_mov_b32 v{vFV+1}, 7")
    publish(7)
    a("s_branch kb_done")
    a.label("kb_hn_far")
    hn_store(" sc1")
    a("s_branch kb_hn_back")
    flush_far()
    slow_path("a")

    a.label("kb_grpb")
    a(f"s_setprio 3\ns_add_u32 s{sO2}, s{sO}, {WS_KV}")
    def kv_round(r):
        a(f"s_add_u32 m0, s{sO}, {r*4096}\ns_add_u32 s{sT}, s{sO2}, {r*4096}")
        a(f"buffer_load_dwordx4 v{vL16}, {ws()}, s{sT} offen lds")
    N1 = 12
    for r in range(N1): kv_round(r)
    vSA, vSD, vTR, vTD, vRO = 100, 101, 102, 103, 104
    sST, sD1, sD2, sS1, sS2 = 63, 26, 27, sT3, sMK
    srd(a, RA, 16, 512*3584); srd(a, RB, 18, 512*3584); srd(a, RD, 20, 1792*1024)
    a(f"""
    s_mul_i32 s{sST}, s{sJ}, 6144
    s_add_u32 s{sST}, s{sST}, {L_STG}
    v_lshrrev_b32 v{vT}, 3, v{vL}
    v_and_b32 v{vT2}, 7, v{vL}
    v_mul_u32_u24 v{vSA}, 3584, v{vT}
    v_lshl_add_u32 v{vSA}, v{vT2}, 4, v{vSA}
    v_lshlrev_b32 v{vSD}, 10, v{vT}
    v_lshl_add_u32 v{vSD}, v{vT2}, 4, v{vSD}
    s_lshl_b32 s{sCNT}, s2, 2
    s_add_u32 s{sCNT}, s{sCNT}, s{sJ}
    s_and_b32 s{sT2}, s{sCNT}, 31
    s_lshr_b32 s{sT}, s{sCNT}, 5
    s_lshl_b32 s{sD1}, s{sT}, 17
    s_lshl_b32 s{sS1}, s{sT}, 7
    s_lshl_b32 s{sT}, s{sT2}, 10
    s_add_u32 s{sD1}, s{sD1}, s{sT}
    s_add_u32 s{sD1}, s{sD1}, {WS_WGU}
    s_mul_i32 s{sT2}, s{sT2}, {16*3584}
    s_add_u32 s{sS1}, s{sS1}, s{sT2}
    s_and_b32 s{sT2}, s{sCNT}, 7
    s_lshr_b32 s{sT}, s{sCNT}, 3
    s_mul_i32 s{sD2}, s{sT2}, {2*FR}
    s_lshl_b32 s{sS2}, s{sT2}, 7
    s_lshl_b32 s{sT2}, s{sT}, 10
    s_add_u32 s{sD2}, s{sD2}, s{sT2}
    s_add_u32 s{sD2}, s{sD2}, {WS_WD}
    s_lshl_b32 s{sT}, s{sT}, 14
    s_add_u32 s{sS2}, s{sS2}, s{sT}
    v_bfe_u32 v{vT}, v{vL}, 2, 2
    v_lshrrev_b32 v{vT2}, 5, v{vL}
    v_lshl_add_u32 v{vT}, v{vT2}, 3, v{vT}
    v_lshl_add_u32 v{vTR}, v{vT}, 7, s{sST}
    v_bfe_u32 v{vT}, v{vL}, 1, 1
    v_lshl_add_u32 v{vTR}, v{vT}, 3, v{vTR}
    v_bfe_u32 v{vT}, v{vL}, 4, 1
    v_lshl_add_u32 v{vTD}, v{vT}, 4, v{vTR}
    v_lshl_add_u32 v{vTR}, v{vT}, 11, v{vTR}
    v_and_b32 v{vT}, 1, v{vL}
    v_lshl_add_u32 v{vTR}, v{vT}, 4, v{vTR}
    v_lshl_add_u32 v{vTD}, v{vT}, 5, v{vTD}
    """)
    attn_addrs(L_OXH)
    a(f"s_waitcnt vmcnt({N1 - R1})\ns_barrier")
    stamp(1)
    for r in range(N1, R3): kv_round(r)
    a(f"s_waitcnt vmcnt({R3 - R2})\ns_barrier")
    for i in range(6):
        r = (RA, RA, RB, RB, RD, RD)[i]
        base, step, va = (sS1, 8*3584, vSA) if i < 4 else (sS2, 8192, vSD)
        a(f"s_add_u32 m0, s{sST}, {i*1024}\ns_add_u32 s{sT}, s{base}, {step*(i&1)}\nbuffer_load_dwordx4 v{va}, s[{r}:{r+3}], s{sT} offen lds")
    for r in range(R3, 33): kv_round(r)
    a(f"s_waitcnt vmcnt({33 - R3})\ns_cmp_ge_u32 s2, 224\ns_cbranch_scc1 kb_rl_done")
    for b in range(6):
        for e in range(2):
            va, off = (vTR, e*512 + b*32) if b < 4 else (vTD, 4096 + e*512 + (b-4)*64)
            a(f"ds_read_b64_tr_b16 {vr(vRO+4*b+2*e,2)}, v{va} offset:{off}")
    for b in range(6):
        d = sD1 if b < 4 else sD2
        a(f"s_waitcnt lgkmcnt({10-2*b})")
        a(f"buffer_store_dwordx4 {vr(vRO+4*b,4)}, v{vL16}, {ws()}, s{d} offen sc1")
        if b not in (3, 5): a(f"s_add_u32 s{d}, s{d}, {0x8000 if b < 4 else FR}")
    a.label("kb_rl_done")
    a(f"""
    s_getreg_b32 s{sT2}, hwreg(HW_REG_XCC_ID, 0, 4)
    s_add_u32 s{sT2}, s{sT2}, 1
    s_lshl_b32 s{sT}, s{sGRP}, 5
    s_add_u32 s{sT}, s{sT}, s{sMEM}
    s_lshl_b32 s{sT}, s{sT}, 2
    s_add_u32 s{sT}, s{sT}, {WS_FLAG + FL_XID}
    v_mov_b32 v100, 1
    v_mov_b32 v101, 0
    v_mov_b32 v102, s{sT2}
    s_mov_b64 exec, 1
    s_cmp_lg_u32 s{sJ}, 0
    s_cbranch_scc1 kb_noxid
    buffer_store_dword v102, v101, {ws()}, s{sT} offen sc1
    """)
    a.label("kb_noxid")
    a("s_barrier"); stamp(2)
    a(f"""
    s_and_b32 s{sT}, s2, 31
    s_lshl_b32 s{sT}, s{sT}, 7
    s_add_u32 s{sT}, s{sT}, {WS_FLAG + FL_RL}
    s_waitcnt vmcnt(0)
    buffer_atomic_add v100, v101, {ws()}, s{sT} offen sc0 sc1
    v_mov_b32 v102, 1
    s_mov_b32 s{sT}, {WS_FLAG + FL_RL + 0x1000}
    s_waitcnt vmcnt(0)
    v_readfirstlane_b32 s{sT2}, v100
    s_cmp_lg_u32 s{sT2}, 31
    s_cbranch_scc1 kb_rl_sent
    buffer_atomic_add v102, v101, {ws()}, s{sT} offen sc0 sc1
    s_waitcnt vmcnt(0)
    v_readfirstlane_b32 s{sT2}, v102
    s_cmp_lg_u32 s{sT2}, 31
    s_cbranch_scc1 kb_rl_sent
    s_mov_b64 exec, 0xffff
    v_lshlrev_b32 v101, 7, v{vL}
    v_mov_b32 v102, 1
    buffer_store_dword v102, v101, {ws()}, s{sT} offen offset:2048 sc1
    """)
    a.label("kb_rl_sent")
    a(f"""
    s_mov_b64 exec, -1
    v_mov_b32 v115, 0
    v_mov_b32 v114, 0
    """)
    stamp(3)
    NW = opt.get("nw", 16)
    vW0, vW1, vWD, vAT, vAC4, vHh = 112, 113, 256 - 8*NW, 80, 16, 8
    sWD, sAT = sO, sO2
    def wd_addrs():
        a(f"""
        s_and_b32 s{sT}, s{sJ}, 1
        s_mul_i32 s{sT2}, s{sT}, {FR}
        v_add_u32 v{vW0}, s{sT2}, v{vL16}
        s_sub_u32 s{sT2}, {FR}, s{sT2}
        v_add_u32 v{vW1}, s{sT2}, v{vL16}
        """)
    a(f"""
    s_and_b32 s{sT}, s{sMEM}, 7
    s_mul_i32 s{sWD}, s{sT}, {2*FR}
    s_mul_i32 s{sT}, s{sJ}, {28*1024}
    s_add_u32 s{sWD}, s{sWD}, s{sT}
    s_add_u32 s{sWD}, s{sWD}, {WS_WD}
    """)
    wd_addrs()
    vm = VM()
    def koff(u): return (7*(u & 3) + (u >> 2))*1024
    def wd_load(u):
        a(f"s_add_u32 s{sT}, s{sWD}, {koff(u)}")
        for n in range(2):
            a(f"buffer_load_dwordx4 {vr(vWD+8*u+4*n,4)}, v{(vW0, vW1)[n]}, {ws()}, s{sT} offen sc1")
            vm.issue(("w", u))
    def ready():
        a(f"s_lshl_b32 s{sT2}, s{sGRP}, 7\ns_add_u32 s{sT2}, s{sT2}, {WS_FLAG + FL_RL + 0x1800}")
        poll("rl", 114, 115, sT2, 1, None, sleep=4, fresh=True)
        stamp(4)
        for u in range(NW): wd_load(u)
    def mid():
        a("s_barrier"); stamp(5)
    TX = -(-3*32768 // KVT) + 1
    a("s_setprio 1")
    attention("b", {opt.get("n0a", 1): lambda: (bar(), ready()), opt.get("n0", 2): mid, TX: bar}, {})
    stamp(6)
    gu_base()
    a("s_barrier")
    gu_dma(1)
    a("s_barrier")
    stamp(7)
    gu_dma(2); gu_dma(3)
    a("s_waitcnt vmcnt(8)\ns_barrier")
    stamp(8)
    gu_dma(4)
    a("s_waitcnt vmcnt(0)\ns_barrier")
    gu_dma(5); gu_dma(6)
    vW0, vW1, vA0_, vA1_, vPL4, vPA4 = 4, 5, 6, 7, 0, 3
    wd_addrs()
    sFA, sHH = sT3, 63
    a(f"""
    s_lshr_b32 s{sT}, s{sJ}, 1
    s_mul_i32 s{sT2}, s{sT}, {FR}
    v_add_u32 v{vA0_}, s{sT2}, v{vL16}
    s_sub_u32 s{sT2}, {FR}, s{sT2}
    v_add_u32 v{vA1_}, s{sT2}, v{vL16}
    s_lshr_b32 s{sT2}, s{sMEM}, 3
    s_lshl_b32 s{sCNT}, s{sGRP}, 1
    s_add_u32 s{sCNT}, s{sCNT}, s{sT2}
    s_lshl_b32 s{sCNT}, s{sCNT}, 1
    s_lshl_b32 s{sFA}, s{sCNT}, 8
    s_add_u32 s{sFA}, s{sFA}, {WS_FLAG + FL_ACT}
    s_mul_i32 s{sAT}, s{sCNT}, {FR}
    s_mul_i32 s{sT2}, s{sJ}, {28*1024}
    s_add_u32 s{sAT}, s{sAT}, s{sT2}
    s_add_u32 s{sAT}, s{sAT}, {WS_ACT}
    s_add_u32 s{sCNT}, s{sCNT}, s{sT}
    s_lshl_b32 s{sHH}, s{sCNT}, 15
    s_and_b32 s{sT}, s{sMEM}, 7
    s_lshl_b32 s{sT}, s{sT}, 1
    s_and_b32 s{sT2}, s{sJ}, 1
    s_add_u32 s{sT}, s{sT}, s{sT2}
    s_lshl_b32 s26, s{sT}, 6
    s_add_u32 s26, s26, s{sHH}
    s_lshl_b32 s{sT}, s{sT}, 11
    s_add_u32 s{sHH}, s{sHH}, s{sT}
    s_add_u32 s{sHH}, s{sHH}, {WS_H}
    s_lshl_b32 s{sT}, s{sJ}, 2
    s_lshl_b32 s{sMK}, 0xf000f, s{sT}
    v_and_b32 v{vPA4}, 15, v{vL}
    v_lshlrev_b32 v{vPA4}, 2, v{vPA4}
    v_bfe_u32 v16, v{vL}, 4, 1
    v_lshl_add_u32 v{vPA4}, v16, 8, v{vPA4}
    v_and_b32 v16, 31, v{vL}
    v_lshlrev_b32 v16, 4, v16
    v_lshrrev_b32 v17, 5, v{vL}
    v_lshl_add_u32 v16, v17, 10, v16
    v_mov_b32 v{vPL4}, 0
    s_lshl_b32 s{sT2}, s{sJ}, 13
    s_add_u32 s{sT2}, s{sT2}, 0x8000
    s_waitcnt vmcnt(0)
    """)
    LW0, LW1 = NW, min(NW + 12, 28)
    lwoff = lambda u: (0, 32768, 98304)[(u - LW0) >> 2] + ((u - LW0) & 3)*2048
    vm, lg = VM(), VM()
    def wd_dma(u):
        for n in range(2):
            a(f"s_add_u32 m0, s{sT2}, {lwoff(u) + n*1024}")
            a(f"s_add_u32 s{sT}, s{sWD}, {koff(u)}" if n == 0 else "s_nop 0")
            a(f"buffer_load_dwordx4 v{(vW0, vW1)[n]}, {ws()}, s{sT} offen sc1 lds"); vm.issue("l")
    if opt.get("pstamp"): stamp(1, inner=True)
    a("s_barrier")
    for u in range(LW0, LW0 + 4): wd_dma(u)
    a("s_barrier")
    PI2 = opt.get("pi2", 2)
    for u in range(LW0 + 4, LW0 + 8):
        if u == LW0 + 8 - PI2: a(f"buffer_load_dword v{vPL4}, v{vPA4}, {ws()}, s{sFA} offen sc1")
        wd_dma(u)
    a(f"s_waitcnt vmcnt({2*PI2})")
    poll("act0", vPL4, vPA4, sFA, 2, None)
    stamp(10)
    blk = {("w", u): vWD + 8*u for u in range(NW)}
    NA = 22 - NW
    free = [vAT + 8*i for i in range(NA)]
    for u in range(NW): vm.pos[("w", u)] = 0
    for h in range(2):
        a(f"buffer_load_dwordx4 {vr(vHh+4*h,4)}, v16, {ws()}, s{sHH} offen offset:{512*h} sc1")
        vm.issue("h")
    def g_ops(kind, u):
        r = blk[(kind, u)] = free.pop(0)
        def one(n):
            if n == 0: a(f"s_add_u32 s{sT}, s{sAT if kind == 'a' else sWD}, {koff(u)}")
            va = (vA0_, vA1_)[n] if kind == "a" else (vW0, vW1)[n]
            a(f"buffer_load_dwordx4 {vr(r+4*n,4)}, v{va}, {ws()}, s{sT} offen sc1"); vm.issue((kind, u))
        return [lambda: one(0), lambda: one(1)]
    vLWD = 8
    def poll_issue(n):
        a(f"buffer_load_dword v{6+n}, v{vPA4}, {ws()}, s{sFA} offen sc1"); vm.issue(("p", n))
    def gate(n):
        a(f"s_waitcnt vmcnt({vm.cnt(('p', n))})\nv_max_u32 v{vPL4}, v{vPL4}, v{6+n}")
        poll(f"act{n}", vPL4, vPA4, sFA, n, sMK)
        if opt.get("gstamp"): a(f"s_sub_u32 s{64+2*(n-2)}, {SPIN}, s{sCNT}\ns_add_u32 s{64+2*(n-2)}, s{64+2*(n-2)}, s64")
        if n == 7: stamp(11)
    for u in range(NA):
        for f in g_ops("a", u): f()
    a(f"s_waitcnt vmcnt({vm.cnt('h')})")
    for i in range(8):
        a(f"v_lshlrev_b32 v{vAC4+2*i}, 16, v{vHh+i}\nv_and_b32 v{vAC4+2*i+1}, 0xffff0000, v{vHh+i}")
    a(f"v_add_u32 v{vLWD}, s{sT2}, v{vL16}\nv_add_u32 v{vLWD+1}, 0x10000, v{vLWD}")
    if opt.get("pstamp"): stamp(2, inner=True)
    a("s_barrier")
    stamp(9)
    for u in range(LW0 + 8, LW1):
        if u == LW1 - opt.get("pi4", 2): poll_issue(4)
        wd_dma(u)
    a(f"s_setprio {opt.get('p4prio', 0)}")
    PI = {opt.get("pi5", 4): 5, opt.get("pi6", 8): 6, opt.get("pi7", 13): 7}
    LAH = opt.get("lah", 6)
    queue = sorted([("a", u) for u in range(NA, 28)] + [("w", u) for u in range(LW1, 28)], key=lambda k: k[1] - (8 if k[0] == "w" else 0))
    nq, last = len(queue), 27 - LAH
    avail = 2
    for u in range(28):
        todo = []
        if u in PI: todo.append(lambda n=PI[u]: poll_issue(n))
        if LW0 <= u + 2 < LW1:
            r = blk[("w", u+2)] = free.pop(0)
            def rd(n, r=r, v=u+2):
                o = lwoff(v) + n*1024
                a(f"ds_read_b128 {vr(r+4*n,4)}, v{vLWD + (o >> 16)} offset:{o & 0xffff}"); lg.issue(v)
            todo += [lambda rd=rd: rd(0), lambda rd=rd: rd(1)]
        while queue and free and (nq - len(queue)) < -(-nq*u // last):
            if queue[0][0] == "a" and queue[0][1] >= 4*avail:
                avail = max(4, avail + 1)
                gate(avail)
            todo += g_ops(*queue.pop(0))
        w = f"vmcnt({min(63, vm.cnt(('a', u)), vm.cnt('l') if u + 2 == LW0 else 63, *([] if LW0 <= u < LW1 else [vm.cnt(('w', u))]))})"
        if LW0 <= u < LW1: w += f" lgkmcnt({lg.cnt(u)})"
        a("s_waitcnt " + w)
        if opt.get("pstamp") and u % 4 == 0 and u < 24: stamp(3 + u//4, wait=False, inner=True)
        for i, k in enumerate((1, 2, 3, 0)):
            A = vAC4 + 16*k
            mf32(A, blk[("w", u)] + 4*(k & 1), blk[("a", u)] + 4*(k >> 1), "0" if (u == 0 and k) else A)
            for _ in range(-(-len(todo) // (4 - i))): todo.pop(0)()
        free += [blk[("w", u)], blk[("a", u)]]
        if u == 23: a("s_barrier")
    assert not queue
    stamp(12)
    for k in (1, 2, 3, 0):
        a(f"""
        s_xor_b32 s{sT}, s{sJ}, {k}
        s_lshr_b32 s{sT2}, s{sT}, 1
        s_mul_i32 s{sT2}, s{sT2}, {98304 - 2*12288}
        s_mul_i32 s{sT}, s{sT}, 12288
        s_add_u32 s{sT}, s{sT}, s{sT2}
        s_add_u32 s{sT}, s{sT}, {max(k-1, 0)*4096}
        v_add_u32 v{4+k}, s{sT}, v{vL16}
        """)
    for k in range(1, 4):
        for q in range(4):
            a(f"ds_write_b128 v{4+k}, {vr(vAC4+16*k+4*q,4)} offset:{q*1024}")
    srd(a, OUT, 22, 2048*1024)
    a(f"""
    v_bfe_u32 v8, v{vL16}, 4, 5
    v_lshlrev_b32 v8, 10, v8
    v_lshrrev_b32 v9, 9, v{vL16}
    v_lshl_add_u32 v8, v9, 5, v8
    s_waitcnt lgkmcnt(0)
    s_barrier
    """)
    stamp(13)
    for q in range(4):
        for k in range(3):
            a(f"ds_read_b128 {vr(32+16*k+4*q,4)}, v4 offset:{k*4096 + q*1024}")
    for q in range(4):
        a(f"s_waitcnt lgkmcnt({9-3*q})")
        for r in range(4*q, 4*q + 4):
            a(f"v_add_f32 v{vAC4+r}, v{vAC4+r}, v{32+r}\nv_add_f32 v{48+r}, v{48+r}, v{64+r}")
        for r in range(4*q, 4*q + 4): a(f"v_add_f32 v{vAC4+r}, v{vAC4+r}, v{48+r}")
        for r in range(2*q, 2*q + 2): a(f"v_cvt_pk_bf16_f32 v{80+r}, v{vAC4+2*r}, v{vAC4+2*r+1}")
        if q & 1:
            a(f"buffer_store_dwordx4 {vr(80+4*(q>>1),4)}, v8, s[{OUT}:{OUT+3}], s26 offen offset:{16*(q>>1)}" + (" sc1" if opt.get("outsc1") else ""))
    a("s_branch kb_done")
    flush_far()
    slow_path("b")

    a.label("kb_done")
    if opt.get("stamp"):
        a("s_waitcnt vmcnt(0)")
        stamp(14)
        a(f"""
        s_lshl_b32 s{sT}, s2, 3
        s_add_u32 s{sT}, s{sT}, s{sW}
        s_lshl_b32 s{sT}, s{sT}, 6
        s_add_u32 s{sT}, s{sT}, {WS_DBG + 0x10000}
        v_mov_b32 v1, 0
        """)
        for i in range(16): a(f"v_mov_b32 v{4+i}, s{64+2*min(i,14)}")
        for i in range(4): a(f"buffer_store_dwordx4 {vr(4+4*i,4)}, v1, {ws()}, s{sT} offen offset:{16*i}")
    if opt.get("dstamp"):
        w = opt["dstamp"] - 1
        a(f"""
        s_cmp_lg_u32 s2, 100
        s_cbranch_scc1 kb_exit
        s_cmp_lg_u32 s{sW}, {w}
        s_cbranch_scc1 kb_exit
        s_load_dwordx2 s[4:5], s[0:1], 80
        s_waitcnt lgkmcnt(0) vmcnt(0)
        s_mov_b32 s6, 256
        s_mov_b32 s7, 0x00020000
        s_mov_b32 s8, {WS_DBG + 100*8*32}
        buffer_load_dwordx4 v[24:27], v1, {ws()}, s8 offen
        buffer_load_dwordx4 v[28:31], v1, {ws()}, s8 offen offset:16
        s_waitcnt vmcnt(0)
        """)
        for i in list(range(4, 20)) + [25, 26, 31]: a(f"v_sub_u32 v{i}, v{i}, v24")
        a("""
        buffer_store_dword v25, v1, s[4:7], 0 offen
        buffer_store_dword v26, v1, s[4:7], 0 offen offset:4
        buffer_store_dword v31, v1, s[4:7], 0 offen offset:8
        """)
        if opt.get("spin") is not None:
            a(f"""
            v_readfirstlane_b32 s10, v24
            v_readfirstlane_b32 s11, v{opt["spin"] if opt["spin"] else 1}
            s_mov_b32 s9, 20000
            s_add_u32 s11, s11, 6000
            """)
            a.label("kb_spin")
            a("""
            s_memrealtime s[12:13]
            s_waitcnt lgkmcnt(0)
            s_sub_u32 s12, s12, s10
            s_sub_u32 s9, s9, 1
            s_cbranch_scc1 kb_spun
            s_cmp_lt_u32 s12, s11
            s_cbranch_scc1 kb_spin
            """)
            a.label("kb_spun")
        for i in range(13): a(f"buffer_store_dword v{4+(i if i < 12 else 14)+(1 if 0 < i < 12 else 0)}, v1, s[4:7], 0 offen offset:{12+4*i}")
    a.label("kb_exit")
    a("s_endpgm")
```

```python
import sys, os
sys.path.insert(0, os.path.dirname(os.path.abspath(__file__)))
from asmlib import *
from layout import *
import ka

def kd(name, vgpr, sgpr=102):
    return f""".p2align 6
.amdhsa_kernel {name}
  .amdhsa_next_free_vgpr {vgpr}
  .amdhsa_next_free_sgpr {sgpr}
  .amdhsa_accum_offset {(vgpr+3)//4*4}
  .amdhsa_group_segment_fixed_size 0
  .amdhsa_kernarg_size 96
  .amdhsa_user_sgpr_count 2
  .amdhsa_user_sgpr_kernarg_segment_ptr 1
  .amdhsa_system_sgpr_workgroup_id_x 1
.end_amdhsa_kernel
"""

def build(opt):
    ref = open(f"cdna_kernels/{NAME}.s.ref").read().split("\n")
    head = [l for l in ref if l.startswith(";") and "@launch" not in l and "Override" not in l and "grid=ceil" not in l]
    kernels = [("qkv_kernel", ka.gen_ka, ka.KA_LDS, 128)]
    if not opt.get("only_a"):
        import kb
        kernels.append((NAME + "_kernel", kb.gen_kb, kb.KB_LDS, 256))
    if opt.get("merge"):
        def gm(a, n, o):
            ka.gen_ka(a, n, o); a(".p2align 8"); kb.gen_kb(a, "kb_entry", o)
        kernels = [(NAME + "_kernel", gm, kb.KB_LDS, 256)]
    out = "\n".join(head) + "\n"
    lines = [f"; @launch kernel={n} grid=(256,1,1) block=(512,1,1) lds={lds}\n" for n, _, lds, _ in kernels]
    if opt.get("merge") == 1: lines = [f"; @launch grid=(256,1,1) block=(512,1,1) lds={kb.KB_LDS}\n"]
    if opt.get("empty") is not None:
        def ge(a, n, o): a.label(n); a("s_endpgm")
        kernels.append(("nop_kernel", ge, 0, 8))
        for _ in range(opt.get("nempty", 1)): lines.insert(opt["empty"], "; @launch kernel=nop_kernel grid=(256,1,1) block=(64,1,1) lds=0\n")
    out += "".join(lines)
    out += '.amdgcn_target "amdgcn-amd-amdhsa--gfx950"\n.text\n'
    nerr = 0
    for n, g, _, _ in kernels:
        a = Asm()
        g(a, n, opt)
        errs = check_hazards(a.text())
        for e in errs[:40]: print(e)
        nerr += len(errs)
        out += f".globl {n}\n.p2align 8\n.type {n},@function\n" + a.text()
    out += '.section .rodata,"a"\n'
    for n, _, _, v in kernels: out += kd(n, v)
    assert nerr == 0, f"{nerr} hazards"
    return out

if __name__ == "__main__":
    opt = {}
    path = f"cdna_kernels/{NAME}.s"
    for x in sys.argv[1:]:
        if x.endswith(".s"): path = x
        elif "=" in x:
            k, v = x.split("="); opt[k] = int(v)
        else: opt[x] = 1
    open(path, "w").write(build(opt))
    print("wrote", path)
```
